```python
import torch

def _softmax(x, axis=-1):
    return torch.softmax(x, dim=axis)

def _gelu(x):
    return torch.nn.functional.gelu(x, approximate='tanh')

def _silu(x):
    return torch.nn.functional.silu(x)

def _sigmoid(x):
    return torch.sigmoid(x)

def _layernorm(x, axis=-1, eps=1e-05):
    m = x.mean(dim=axis, keepdim=True)
    v = x.var(dim=axis, keepdim=True, unbiased=False)
    return (x - m) / torch.sqrt(v + eps)

def _scatter_add(tgt, idx, src, axis=0):
    return tgt.clone().index_add_(axis, idx, src)

def _segment_sum(src, seg, n):
    out = torch.zeros((n,) + src.shape[1:], dtype=src.dtype)
    return out.index_add_(0, seg, src)

def _pad(x, pw):
    flat = tuple((v for pair in reversed(pw) for v in pair))
    return torch.nn.functional.pad(x, flat)
kernel_name = 'standalone__tree_speculative_verify_tree_attention_over_candidate_token_tree__decode'

def setup_inputs():

    _w = lambda a: (lambda t: t.to(torch.bfloat16) if t.is_floating_point() else t)(torch.as_tensor(a))
    B, Hq, Hkv, T, C, D = (8, 32, 4, 1, 4096, 128)
    tree_mask = torch.zeros((B, T, T), dtype=float)
    for b in range(B):
        parent = torch.zeros(T, dtype=torch.int64)
        for i in range(1, T):
            parent[i] = int(torch.randint(0, i, (1,)).item())
        for i in range(T):
            j = i
            tree_mask[b, i, j] = 1.0
            while j > 0:
                j = parent[j]
                tree_mask[b, i, j] = 1.0
    return {'q': _w((lambda *s: torch.randn(*s, dtype=torch.bfloat16) * 0.8)(B, Hq, T, D)), 'k_cache': _w((lambda *s: torch.randn(*s, dtype=torch.bfloat16) * 0.8)(B, Hkv, C, D)), 'v_cache': _w((lambda *s: torch.randn(*s, dtype=torch.bfloat16) * 0.05)(B, Hkv, C, D)), 'k_tree': _w((lambda *s: torch.randn(*s, dtype=torch.bfloat16) * 0.8)(B, Hkv, T, D)), 'v_tree': _w((lambda *s: torch.randn(*s, dtype=torch.bfloat16) * 0.05)(B, Hkv, T, D)), 'tree_mask': _w(tree_mask)}

def reference(q, k_cache, v_cache, k_tree, v_tree, tree_mask):
    B, Hq, T, D = q.shape
    Hkv, C = (k_cache.shape[1], k_cache.shape[2])
    rep = Hq // Hkv
    kc = (lambda x, n, axis: torch.repeat_interleave(x, n, dim=axis))(k_cache, rep, axis=1)
    vc = (lambda x, n, axis: torch.repeat_interleave(x, n, dim=axis))(v_cache, rep, axis=1)
    kt = (lambda x, n, axis: torch.repeat_interleave(x, n, dim=axis))(k_tree, rep, axis=1)
    vt = (lambda x, n, axis: torch.repeat_interleave(x, n, dim=axis))(v_tree, rep, axis=1)
    k = torch.concatenate([kc, kt], axis=2)
    v = torch.concatenate([vc, vt], axis=2)
    scale = D ** (-0.5)
    scores = torch.einsum('bhqd,bhkd->bhqk', q, k) * scale
    ctx_mask = torch.ones((B, 1, T, C), dtype=scores.dtype)
    tm = tree_mask[:, None, :, :].clone()
    full_mask = torch.concatenate([ctx_mask, tm], axis=-1)
    scores = scores + (1.0 - full_mask) * -1000000000.0
    p = _softmax(scores, axis=-1)
    return torch.einsum('bhqk,bhkd->bhqd', p, v)
```

```python
import re, itertools

TRANS = ('v_exp_', 'v_log_', 'v_rcp_', 'v_rsq_', 'v_sqrt_', 'v_sin_', 'v_cos_')
DPP_KEYS = ('quad_perm', 'row_shl', 'row_shr', 'row_ror', 'wave_shl', 'wave_shr', 'wave_rol', 'wave_ror',
            'row_mirror', 'row_half_mirror', 'row_bcast', 'row_newbcast')


def regs_of(tok):
    tok = tok.strip()
    neg = tok.lstrip('-')
    if neg.startswith('abs(') and neg.endswith(')'):
        neg = neg[4:-1]
    if neg.startswith('|') and neg.endswith('|'):
        neg = neg[1:-1]
    m = re.fullmatch(r'([vsa])(\d+)', neg)
    if m:
        return {(m.group(1), int(m.group(2)))}
    m = re.fullmatch(r'([vsa])\[(\d+):(\d+)\]', neg)
    if m:
        return {(m.group(1), i) for i in range(int(m.group(2)), int(m.group(3)) + 1)}
    if neg == 'vcc':
        return {('s', 'vcc_lo'), ('s', 'vcc_hi')}
    if neg in ('vcc_lo', 'vcc_hi'):
        return {('s', neg)}
    if neg == 'exec':
        return {('s', 'exec_lo'), ('s', 'exec_hi')}
    if neg in ('exec_lo', 'exec_hi'):
        return {('s', neg)}
    if neg == 'm0':
        return {('s', 'm0')}
    return set()


def split_ops(s):
    out, depth, cur = [], 0, ''
    for ch in s:
        if ch in '[(':
            depth += 1
        if ch in '])':
            depth -= 1
        if ch == ',' and depth == 0:
            out.append(cur.strip())
            cur = ''
        else:
            cur += ch
    if cur.strip():
        out.append(cur.strip())
    return out


class Ins:
    def __init__(self, text):
        self.text = text
        t = text.split(';')[0].strip()
        self.is_label = t.endswith(':')
        self.label = t[:-1] if self.is_label else None
        self.op = ''
        self.kind = 'label' if self.is_label else 'other'
        self.wr = set(); self.rd = set()
        self.dpp = False
        self.states = 0 if (self.is_label or not t or t.startswith('.')) else 1
        self.mfma = None
        self.branch = None
        if self.is_label or not t or t.startswith('.'):
            return
        parts = t.split(None, 1)
        self.op = op = parts[0]
        rest = parts[1] if len(parts) > 1 else ''
        ops = split_ops(rest)
        mods = []
        if ops:
            last = ops[-1]
            toks, depth, cur = [], 0, ''
            for ch in last:
                if ch in '[(':
                    depth += 1
                if ch in '])':
                    depth -= 1
                if ch.isspace() and depth == 0:
                    if cur:
                        toks.append(cur)
                    cur = ''
                else:
                    cur += ch
            if cur:
                toks.append(cur)
            ops[-1] = toks[0]
            mods = toks[1:]
        self.ops, self.mods = ops, mods
        self.dpp = any(m.startswith(DPP_KEYS) for m in mods) or op.endswith('_dpp')
        R = [regs_of(o) for o in ops]
        if op == 's_nop':
            self.kind = 'nop'; self.states = int(ops[0], 0) + 1
        elif op.startswith('v_mfma'):
            self.kind = 'mfma'
            self.wr = R[0]; self.A, self.B, self.C = R[1], R[2], R[3]
            self.rd = R[1] | R[2] | R[3]
            self.passes = 8 if '32x32' in op else 4
        elif op.startswith('v_'):
            self.kind = 'valu'
            if op.startswith('v_cmpx'):
                raise ValueError('avoid v_cmpx')
            if op.startswith('v_permlane') and 'swap' in op:
                self.wr = R[0] | R[1]; self.rd = R[0] | R[1]
            elif op.startswith(('v_add_co', 'v_sub_co', 'v_addc_co', 'v_subb_co')):
                self.wr = R[0] | R[1]; self.rd = set().union(*R[2:])
            else:
                self.wr = R[0]
                self.rd = set().union(*R[1:]) if len(R) > 1 else set()
                if op.startswith(('v_fmac', 'v_mac', 'v_dot2c', 'v_writelane')) or self.dpp or 'd16' in op:
                    self.rd |= R[0]
                if op.startswith('v_cndmask') and len(ops) == 3:
                    self.rd |= regs_of('vcc')
            self.trans = op.startswith(TRANS)
        elif op.startswith('buffer_'):
            self.kind = 'vmem'
            lds = 'lds' in mods
            if 'load' in op and not lds:
                self.wr = R[0]; self.rd = set().union(*R[1:])
                if 'd16' in op:
                    self.rd |= R[0]
                self.vdata = set()
            elif lds:
                self.rd = set().union(*R) | regs_of('m0'); self.vdata = set()
            else:
                self.rd = set().union(*R); self.vdata = R[0]
                if 'atomic' in op and 'sc0' in mods:
                    self.wr = R[0]
            self.wide_store = ('store' in op) and ('x3' in op or 'x4' in op)
        elif op.startswith('global_'):
            raise ValueError('use buffer ops')
        elif op.startswith('ds_'):
            self.kind = 'ds'
            if 'read' in op or 'bpermute' in op or 'swizzle' in op or 'rtn' in op:
                self.wr = R[0]; self.rd = set().union(*R[1:]) if len(R) > 1 else set()
            else:
                self.rd = set().union(*R)
            if 'addtid' in op:
                self.rd |= regs_of('m0')
        elif op.startswith('s_'):
            self.kind = 'salu'
            if op.startswith(('s_cbranch', 's_branch')):
                self.kind = 'branch'; self.branch = ops[0]
            elif op.startswith('s_cmp') or op.startswith('s_bitcmp'):
                self.rd = set().union(*R)
            elif op in ('s_waitcnt', 's_barrier', 's_endpgm', 's_setprio', 's_sleep'):
                pass
            elif op.startswith('s_memrealtime') or op.startswith('s_memtime'):
                self.kind = 'smem'; self.wr = R[0]
            elif op.startswith('s_load'):
                self.kind = 'smem'; self.wr = R[0]; self.rd = R[1]
            else:
                self.wr = R[0] if R else set()
                self.rd = set().union(*R[1:]) if len(R) > 1 else set()
                if 'saveexec' in op:
                    self.wr |= regs_of('exec')


def vset(s):
    return {r for r in s if r[0] in 'va'}


def sset(s):
    return {r for r in s if r[0] == 's'}


def need(prod, cons):
    n = 0
    pk, ck = prod.kind, cons.kind
    if pk == 'valu':
        vw, sw = vset(prod.wr), sset(prod.wr)
        if ck == 'mfma' and vw & cons.rd:
            n = max(n, 2)
        if ck == 'valu':
            if cons.dpp and vw & vset(cons.rd):
                n = max(n, 2)
            if cons.op.startswith('v_permlane') and vw & vset(cons.rd):
                n = max(n, 2)
            if cons.op.startswith(('v_readlane', 'v_readfirstlane')) and vw & vset(cons.rd):
                n = max(n, 1)
            if prod.trans and vw & cons.rd:
                n = max(n, 1)
            if sw & sset(cons.rd):
                n = max(n, 4 if cons.op.startswith(('v_readlane', 'v_writelane')) else 2)
            if any(m.startswith(('op_sel', 'dst_sel')) for m in prod.mods) and vw & (cons.rd | cons.wr):
                n = max(n, 1)
        if ck == 'vmem' and sw & sset(cons.rd):
            n = max(n, 5)
        if ck == 'mfma' and sw & regs_of('exec'):
            n = max(n, 4)
    if pk == 'mfma':
        P = prod.passes
        big = {4: 8, 8: 12}[P]
        if ck == 'mfma':
            if prod.wr & (cons.A | cons.B):
                n = max(n, big)
            if prod.wr & cons.C:
                if not (prod.wr == cons.C and cons.passes == P):
                    n = max(n, {4: 6, 8: 10}[P])
            if prod.wr & cons.wr and prod.wr != cons.wr:
                n = max(n, big)
        if ck == 'valu':
            if prod.wr & (cons.rd | cons.wr):
                n = max(n, big)
            if prod.C & vset(cons.wr):
                n = max(n, {4: 3, 8: 7}[P])
        if ck in ('vmem', 'ds'):
            if prod.wr & (cons.rd | cons.wr):
                n = max(n, big)
    if pk == 'vmem' and getattr(prod, 'wide_store', False):
        if prod.vdata & cons.wr:
            n = max(n, 2 if ck == 'valu' else 1)
    if pk == 'salu' and (('s', 'm0') in prod.wr):
        if (ck == 'vmem' and 'lds' in cons.mods) or (ck == 'ds' and 'addtid' in cons.op):
            n = max(n, 1)
    return n


MAXLOOK = 24


class Prog:
    def __init__(self):
        self.lines = []

    def __call__(self, text):
        for ln in text.split('\n'):
            ln = ln.strip()
            if ln:
                self.lines.append(ln)

    def comment(self, c):
        self.lines.append('; ' + c)

    def finalize(self, verbose=False):
        ins = []
        for ln in self.lines:
            if ln.startswith(';'):
                i = Ins('')
                i.text = ln
                ins.append(i)
            else:
                ins.append(Ins(ln))
        labels = {}
        for changed_iter in range(50):
            labels = {x.label: k for k, x in enumerate(ins) if x.is_label}
            preds = {k: [] for k in range(len(ins))}
            for k, x in enumerate(ins):
                if x.kind == 'branch':
                    tgt = labels[x.branch]
                    preds[tgt].append(k)
                    if x.op != 's_branch' and k + 1 < len(ins):
                        preds[k + 1].append(k)
                elif x.op == 's_endpgm':
                    pass
                elif k + 1 < len(ins):
                    preds[k + 1].append(k)
            inserted = False
            for k, c in enumerate(ins):
                if c.states == 0 or c.kind in ('nop',):
                    continue
                worst = 0
                stack = [(p, 0) for p in preds[k]]
                seen = {}
                while stack:
                    p, d = stack.pop()
                    if d >= MAXLOOK:
                        continue
                    if seen.get(p, 99) <= d:
                        continue
                    seen[p] = d
                    x = ins[p]
                    if x.states:
                        r = need(x, c)
                        if r - d > worst:
                            worst = r - d
                    for pp in preds[p]:
                        stack.append((pp, d + x.states))
                if worst > 0:
                    nop = Ins('s_nop %d' % (worst - 1))
                    nop.text = 's_nop %d' % (worst - 1)
                    ins.insert(k, nop)
                    if verbose:
                        print('pad', worst, 'before', c.text)
                    inserted = True
                    break
            if not inserted:
                break
        else:
            pass
        return ins

    def text(self, verbose=False):
        while True:
            before = len(self.lines)
            ins = self.finalize(verbose)
            self.lines = [x.text for x in ins]
            if len(self.lines) == before:
                break
        out = []
        for ln in self.lines:
            if ln.endswith(':') or ln.startswith('.'):
                out.append(ln)
            else:
                out.append('    ' + ln)
        return '\n'.join(out) + '\n'
```

```python
import sys, struct, math, argparse
from asmlib import Prog

NAME = 'standalone__tree_speculative_verify_tree_attention_over_candidate_token_tree__decode'
HEADER = open('cdna_kernels/%s.s.ref' % NAME).read().split('; Override launch')[0]


def f2u(x):
    return struct.unpack('<I', struct.pack('<f', x))[0]


def vr(a, n=1):
    return 'v%d' % a if n == 1 else 'v[%d:%d]' % (a, a + n - 1)


def sr(a, n=1):
    return 's%d' % a if n == 1 else 's[%d:%d]' % (a, a + n - 1)


INBOX = 4224
OOB = 0x7ff00000


def gen(opt):
    p = Prog()
    nt = ' nt' if opt.nt else ''
    sQ, sK, sV, sKT, sVT, sMK, sOUT, sDBG, sWS = 8, 12, 16, 20, 24, 28, 32, 36, 40
    sB = 44
    sQoff, sC, sPe, sPo = 48, 49, 50, 51
    sHi = 52
    sG, sS, sInb, sSlot, sT, sCap, sMrow, sStat = 54, 55, 56, 57, 58, 59, 60, 61
    sTmp = 62
    vLane, vK, vV, vQ = 1, 2, 3, 4
    Q, K, V, S, P, BT, O, L, ONES = 8, 24, 88, 152, 168, 176, 188, 220, 224
    X = 228
    vFlagSt, vFlagLd, vOne, vVT0, vVT1, vLw, vLr, vMc, vF = X, X + 1, X + 2, X + 3, X + 4, X + 5, X + 6, X + 7, X + 8
    T0 = X + 10
    LDS_MAX, LDS_L, LDS_O = 0, 256, 512
    C = math.log2(math.e) / math.sqrt(128.0)

    p('s_cmp_ge_u32 s2, 256')
    p('s_cbranch_scc1 L_END')
    for srd, off in ((sK, 8), (sQ, 0), (sV, 16), (sWS, 64), (sKT, 24), (sVT, 32), (sMK, 40), (sOUT, 48), (sDBG, 56)):
        p('s_load_dwordx2 %s, s[0:1], %d' % (sr(srd, 2), off))
    for srd, size in ((sK, 0x2000000), (sQ, 65536), (sV, 0x2000000), (sWS, 0x10000000), (sKT, 8192), (sVT, 8192),
                      (sMK, 16), (sOUT, 65536), (sDBG, 256)):
        p('s_mov_b32 %s, 0x%x' % (sr(srd + 2), size))
        p('s_mov_b32 %s, 0x20000' % sr(srd + 3))
    p('v_lshrrev_b32 v5, 6, v0')
    p('v_and_b32 %s, 63, v0' % vr(vLane))
    p('v_readfirstlane_b32 s3, v5')
    p('v_and_b32 v5, 3, v0')
    p('v_bfe_u32 v6, v0, 2, 2')
    p('v_lshl_or_b32 v5, v5, 2, v6')
    p('v_bfe_u32 v6, v0, 4, 2')
    p('v_lshlrev_b32 v6, 4, v6')
    if opt.knat:
        p('v_lshlrev_b32 %s, 4, %s' % (vr(vK), vr(vLane)))
    else:
        p('v_lshl_or_b32 %s, v5, 8, v6' % vr(vK))
    p('v_and_b32 v5, 7, v0')
    p('v_lshl_or_b32 %s, v5, 8, v6' % vr(vQ))
    p('v_lshlrev_b32 %s, 4, %s' % (vr(vV), vr(vLane)))
    p('s_lshr_b32 %s, s2, 3' % sr(sG))
    p('s_and_b32 %s, s2, 7' % sr(sS))
    p('s_lshl_b32 s4, s2, 17')
    p('s_lshl_b32 s5, s3, 14')
    p('s_add_u32 %s, s4, s5' % sr(sB))
    p('s_add_u32 %s, %s, 4096' % (sr(sB + 1), sr(sB)))
    p('s_add_u32 %s, %s, 8192' % (sr(sB + 2), sr(sB)))
    p('s_add_u32 %s, %s, 12288' % (sr(sB + 3), sr(sB)))
    p('s_lshl_b32 %s, %s, 11' % (sr(sQoff), sr(sG)))
    p('s_mul_i32 s4, %s, %d' % (sr(sG), 8 * INBOX))
    p('s_lshl_b32 s5, %s, 9' % sr(sS))
    p('s_add_u32 %s, s4, s5' % sr(sTmp))
    p('s_lshl_b32 s5, %s, 4' % sr(sS))
    p('s_add_u32 s4, s4, s5')
    p('s_add_u32 %s, s4, 4096' % sr(sTmp + 1))
    p('s_mul_i32 s5, s3, %d' % INBOX)
    p('s_add_u32 %s, %s, s5' % (sr(sSlot), sr(sTmp)))
    p('s_add_u32 %s, %s, s5' % (sr(sStat), sr(sTmp + 1)))
    p('s_mul_i32 %s, s2, %d' % (sr(sInb), INBOX))
    p('v_mov_b32 v247, 0')
    p('s_cmp_eq_u32 s3, 0')
    p('s_waitcnt lgkmcnt(0)')
    p('s_cbranch_scc0 L_ISSUE')
    p('v_mov_b32 v240, -1')
    p('v_mov_b32 v241, -1')
    p('v_mov_b32 v242, -1')
    p('v_mov_b32 v243, -1')
    p('v_lshrrev_b32 v5, 5, %s' % vr(vLane))
    p('v_and_b32 v6, 31, %s' % vr(vLane))
    p('v_mul_u32_u24 v7, %d, v5' % (4 * INBOX))
    p('v_lshl_add_u32 v7, v6, 4, v7')
    for i in range(4):
        if i:
            p('s_add_u32 %s, %s, %d' % (sr(sTmp), sr(sTmp), INBOX))
        p('buffer_store_dwordx4 v[240:243], v7, %s, %s offen sc1' % (sr(sWS, 4), sr(sTmp)))
    p('v_mul_u32_u24 v7, %d, %s' % (INBOX, vr(vLane)))
    p('s_mov_b64 exec, 0xff')
    p('buffer_store_dwordx4 v[240:243], v7, %s, %s offen sc1' % (sr(sWS, 4), sr(sTmp + 1)))
    p('s_mov_b64 exec, -1')
    p('v_lshlrev_b32 v7, 2, %s' % vr(vLane))
    p('s_lshl_b32 s4, s2, 8')
    p('buffer_load_dword v244, v7, %s, s4 offen' % sr(sQ, 4))
    p('s_lshl_b32 s5, %s, 8' % sr(sG))
    p('buffer_load_dword v245, v7, %s, s5 offen' % sr(sKT, 4))
    p('s_lshr_b32 s4, %s, 2' % sr(sG))
    p('s_lshl_b32 s4, s4, 1')
    p('v_mov_b32 v7, 0')
    p('buffer_load_ushort v246, v7, %s, s4 offen' % sr(sMK, 4))
    p('v_and_b32 v7, 3, v6')
    p('v_lshlrev_b32 v7, 1, v7')
    p('v_add_u32 v7, v7, v5')
    p('v_lshrrev_b32 v6, 2, v6')
    p('v_lshl_add_u32 v7, v7, 4, v6')
    p('v_lshlrev_b32 v247, 1, v7')
    p('buffer_load_ushort %s, v247, %s, s5 offen' % (vr(vVT0), sr(sVT, 4)))
    p('buffer_load_ushort %s, v247, %s, s5 offen offset:16' % (vr(vVT1), sr(sVT, 4)))
    p('L_ISSUE:')
    for sl in range(4):
        p('buffer_load_dwordx4 %s, %s, %s, %s offen offset:%d' % (vr(Q + 4 * sl, 4), vr(vQ), sr(sQ, 4), sr(sQoff), sl * 64))
    for T in range(4):
        for sl in range(4):
            off = sl * 1024 if opt.knat else sl * 64
            p('buffer_load_dwordx4 %s, %s, %s, %s offen offset:%d%s' % (vr(K + 16 * T + 4 * sl, 4), vr(vK), sr(sK, 4), sr(sB + T), off, nt))
    if opt.bar0:
        p('s_barrier')
    for u in range(2):
        for j in range(8):
            p('buffer_load_dwordx4 %s, %s, %s, %s offen offset:%d%s' % (vr(V + 32 * u + 4 * j, 4), vr(vV), sr(sV, 4), sr(sB + 2 * u + (j >> 2)), (j & 3) * 1024, nt))
    p('s_mov_b32 %s, 0x%08x' % (sr(sC), f2u(C)))
    p('s_mov_b32 %s, 0x05040100' % sr(sPe))
    p('s_mov_b32 %s, 0x07060302' % sr(sPo))
    p('s_mov_b32 %s, 0xff00ff00' % sr(sHi))
    p('s_mov_b32 %s, 0xff00ff00' % sr(sHi + 1))
    p('s_mov_b32 %s, 0x10000' % sr(sCap))
    for r in range(4):
        p('v_mov_b32 %s, 0x3f803f80' % vr(ONES + r))
    p('v_mov_b32 %s, 1' % vr(vOne))
    p('v_mov_b32 v5, 0x%x' % OOB)
    p('v_mov_b32 v6, s2')
    p('v_cmp_eq_u32 vcc, 0, v0')
    p('v_cndmask_b32 %s, v5, v6, vcc' % vr(vFlagSt))
    p('s_lshl_b32 s4, %s, 3' % sr(sG))
    p('v_mov_b32 v6, s4')
    p('v_cndmask_b32 %s, v5, v6, vcc' % vr(vFlagLd))
    p('v_and_b32 v5, 7, v0')
    p('v_mul_u32_u24 v5, 528, v5')
    p('v_bfe_u32 v6, v0, 3, 1')
    p('v_lshl_add_u32 v5, v6, 8, v5')
    p('v_bfe_u32 v6, v0, 4, 2')
    p('v_lshl_add_u32 v5, v6, 4, v5')
    p('s_mul_i32 s4, s3, 4224')
    p('s_add_u32 s4, s4, %d' % LDS_O)
    p('v_add_u32 %s, s4, v5' % vr(vLw))
    p('v_lshrrev_b32 v5, 5, %s' % vr(vLane))
    p('v_mul_u32_u24 v5, %d, v5' % (4 * 4224))
    p('v_and_b32 v6, 31, %s' % vr(vLane))
    p('v_lshl_add_u32 v5, v6, 4, v5')
    p('s_mul_i32 s4, s3, 528')
    p('s_add_u32 s4, s4, %d' % LDS_O)
    p('v_add_u32 %s, s4, v5' % vr(vLr))
    p('s_cmp_eq_u32 s3, 0')
    p('s_cbranch_scc0 L_NOTREE')
    p('s_waitcnt vmcnt(36)')
    p('v_lshlrev_b32 v5, 16, v244')
    p('v_and_b32 v244, 0xffff0000, v244')
    p('v_lshlrev_b32 v6, 16, v245')
    p('v_and_b32 v245, 0xffff0000, v245')
    p('v_mul_f32 v5, v5, v6')
    p('v_fmac_f32 v5, v244, v245')
    p('v_add_f32_dpp v5, v5, v5 row_shr:1 row_mask:0xf bank_mask:0xf bound_ctrl:0')
    p('v_add_f32_dpp v5, v5, v5 row_shr:2 row_mask:0xf bank_mask:0xf bound_ctrl:0')
    p('v_add_f32_dpp v5, v5, v5 row_shr:4 row_mask:0xf bank_mask:0xf bound_ctrl:0')
    p('v_add_f32_dpp v5, v5, v5 row_shr:8 row_mask:0xf bank_mask:0xf bound_ctrl:0')
    p('v_add_f32_dpp v5, v5, v5 row_bcast:15 row_mask:0xa bank_mask:0xf')
    p('v_add_f32_dpp v5, v5, v5 row_bcast:31 row_mask:0xc bank_mask:0xf')
    p('v_lshlrev_b32 v246, 16, v246')
    p('v_sub_f32 v246, 1.0, v246')
    p('v_mul_f32 v246, 0x%08x, v246' % f2u(-1.0e9 * math.log2(math.e)))
    p('v_readlane_b32 s4, v5, 63')
    p('v_lshlrev_b32 %s, 16, %s' % (vr(vVT0), vr(vVT0)))
    p('v_lshlrev_b32 %s, 16, %s' % (vr(vVT1), vr(vVT1)))
    p('v_mov_b32 v5, s4')
    p('v_mul_f32 v5, %s, v5' % sr(sC))
    p('v_add_f32 v246, v5, v246')
    p('L_NOTREE:')
    p('buffer_store_byte %s, %s, %s, 0 offen sc1' % (vr(vOne), vr(vFlagSt), sr(sDBG, 4)))
    for T in range(4):
        p('s_waitcnt vmcnt(%d)' % (17 + (3 - T) * 4))
        for sl in range(4):
            src = '0' if sl == 0 else vr(S + 4 * T, 4)
            p('v_mfma_f32_16x16x32_bf16 %s, %s, %s, %s' % (vr(S + 4 * T, 4), vr(K + 16 * T + 4 * sl, 4), vr(Q + 4 * sl, 4), src))
    m = T0
    p('v_max3_f32 %s, %s, %s, %s' % (vr(m), vr(S), vr(S + 1), vr(S + 2)))
    p('v_max3_f32 %s, %s, %s, %s' % (vr(m), vr(m), vr(S + 3), vr(S + 4)))
    for k in range(5, 15, 2):
        p('v_max3_f32 %s, %s, %s, %s' % (vr(m), vr(m), vr(S + k), vr(S + k + 1)))
    p('v_max_f32 %s, %s, %s' % (vr(m), vr(m), vr(S + 15)))
    t = T0 + 1
    p('v_mov_b32 %s, %s' % (vr(t), vr(m)))
    p('v_permlane16_swap_b32 %s, %s' % (vr(m), vr(t)))
    p('v_max_f32 %s, %s, %s' % (vr(m), vr(m), vr(t)))
    p('v_mov_b32 %s, %s' % (vr(t), vr(m)))
    p('v_permlane32_swap_b32 %s, %s' % (vr(m), vr(t)))
    p('v_max_f32 %s, %s, %s' % (vr(m), vr(m), vr(t)))
    p('v_and_b32 v5, 7, v0')
    p('v_lshlrev_b32 v5, 5, v5')
    p('s_lshl_b32 s4, s3, 2')
    p('v_add_u32 v6, s4, v5')
    p('s_mov_b64 exec, 0xff')
    p('ds_write_b32 v6, %s offset:%d' % (vr(m), LDS_MAX))
    p('s_mov_b64 exec, -1')
    p('s_waitcnt lgkmcnt(0)')
    p('s_barrier')
    a = BT
    p('ds_read_b128 %s, v5 offset:%d' % (vr(a, 4), LDS_MAX))
    p('ds_read_b128 %s, v5 offset:%d' % (vr(a + 4, 4), LDS_MAX + 16))
    p('s_waitcnt lgkmcnt(0)')
    p('v_max3_f32 %s, %s, %s, %s' % (vr(m), vr(a), vr(a + 1), vr(a + 2)))
    p('v_max3_f32 %s, %s, %s, %s' % (vr(t), vr(a + 3), vr(a + 4), vr(a + 5)))
    p('v_max3_f32 %s, %s, %s, %s' % (vr(m), vr(m), vr(a + 6), vr(a + 7)))
    p('v_max_f32 %s, %s, %s' % (vr(m), vr(m), vr(t)))
    p('v_mul_f32 %s, %s, %s' % (vr(vMc), sr(sC), vr(m)))
    for k in range(16):
        p('v_fma_f32 %s, %s, %s, -%s' % (vr(S + k), vr(S + k), sr(sC), vr(vMc)))
    for k in range(16):
        p('v_exp_f32 %s, %s' % (vr(S + k), vr(S + k)))
    for k in range(8):
        p('v_cvt_pk_bf16_f32 %s, %s, %s' % (vr(P + k), vr(S + 2 * k), vr(S + 2 * k + 1)))
    p('v_readlane_b32 %s, %s, s3' % (sr(sMrow), vr(vMc)))
    p('v_mfma_f32_16x16x32_bf16 %s, %s, %s, 0' % (vr(L, 4), vr(ONES, 4), vr(P, 4)))
    p('v_mfma_f32_16x16x32_bf16 %s, %s, %s, %s' % (vr(L, 4), vr(ONES, 4), vr(P + 4, 4), vr(L, 4)))
    p('s_mov_b64 exec, 0xff')
    p('ds_write_b32 v6, %s offset:%d' % (vr(L), LDS_L))
    p('s_mov_b64 exec, -1')
    p('s_waitcnt lgkmcnt(0)')
    p('s_barrier')
    p('s_lshl_b32 s4, s3, 5')
    p('v_mov_b32 v5, s4')
    p('ds_read_b128 %s, v5 offset:%d' % (vr(a, 4), LDS_L))
    p('ds_read_b128 %s, v5 offset:%d' % (vr(a + 4, 4), LDS_L + 16))
    p('s_waitcnt lgkmcnt(0)')
    p('v_pk_add_f32 %s, %s, %s' % (vr(a, 2), vr(a, 2), vr(a + 2, 2)))
    p('v_pk_add_f32 %s, %s, %s' % (vr(a + 4, 2), vr(a + 4, 2), vr(a + 6, 2)))
    p('v_pk_add_f32 %s, %s, %s' % (vr(a, 2), vr(a, 2), vr(a + 4, 2)))
    p('v_add_f32 %s, %s, %s' % (vr(a + 1), vr(a), vr(a + 1)))
    p('v_mov_b32 %s, %s' % (vr(a), sr(sMrow)))
    p('v_min_u32 %s, -2, %s' % (vr(a), vr(a)))
    p('v_min_u32 %s, -2, %s' % (vr(a + 1), vr(a + 1)))
    p('v_mov_b32 v5, 0')
    p('s_mov_b64 exec, 1')
    p('buffer_store_dwordx2 %s, v5, %s, %s offen sc1' % (vr(a, 2), sr(sWS, 4), sr(sStat)))
    p('s_mov_b64 exec, -1')
    order = [0, 4, 1, 5, 2, 6, 3, 7]

    def perms(u, e, dst):
        sel = sPo if (e & 1) else sPe
        for r in range(4):
            hi = V + 32 * u + 4 * (2 * r + 1) + (e >> 1)
            lo = V + 32 * u + 4 * (2 * r) + (e >> 1)
            p('v_perm_b32 %s, %s, %s, %s' % (vr(dst + r), vr(hi), vr(lo), sr(sel)))

    def pv(u):
        sets = [BT + 4, BT + 8, BT]
        perms(u, order[0], sets[0])
        for idx, e in enumerate(order):
            if idx + 1 < 8:
                perms(u, order[idx + 1], sets[(idx + 1) % 3])
            src = '0' if u == 0 else vr(O + 4 * e, 4)
            p('v_mfma_f32_16x16x32_bf16 %s, %s, %s, %s' % (vr(O + 4 * e, 4), vr(sets[idx % 3], 4), vr(P + 4 * u, 4), src))

    p('s_waitcnt vmcnt(10)')
    pv(0)
    p('buffer_load_dwordx2 %s, %s, %s, 0 offen sc1' % (vr(vF, 2), vr(vFlagLd), sr(sDBG, 4)))
    p('s_waitcnt vmcnt(3)')
    pv(1)
    for e in range(4):
        for i in range(4):
            p('v_cndmask_b32 %s, %s, %s, %s' % (vr(O + 4 * e + i), vr(O + 4 * e + i), vr(O + 4 * (e + 4) + i), sr(sHi, 2)))
        p('ds_write_b128 %s, %s offset:%d' % (vr(vLw), vr(O + 4 * e, 4), e * 64))
    p('s_waitcnt lgkmcnt(0)')
    p('s_barrier')
    R = S
    for i in range(4):
        p('ds_read_b128 %s, %s offset:%d' % (vr(R + 4 * i, 4), vr(vLr), i * 4224))
    p('s_waitcnt lgkmcnt(2)')
    p('v_pk_add_f32 %s, %s, %s' % (vr(R, 2), vr(R, 2), vr(R + 4, 2)))
    p('v_pk_add_f32 %s, %s, %s' % (vr(R + 2, 2), vr(R + 2, 2), vr(R + 6, 2)))
    p('s_waitcnt lgkmcnt(0)')
    p('v_pk_add_f32 %s, %s, %s' % (vr(R + 8, 2), vr(R + 8, 2), vr(R + 12, 2)))
    p('v_pk_add_f32 %s, %s, %s' % (vr(R + 10, 2), vr(R + 10, 2), vr(R + 14, 2)))
    p('v_pk_add_f32 %s, %s, %s' % (vr(R, 2), vr(R, 2), vr(R + 8, 2)))
    p('v_pk_add_f32 %s, %s, %s' % (vr(R + 2, 2), vr(R + 2, 2), vr(R + 10, 2)))
    p('v_permlane32_swap_b32 %s, %s' % (vr(R), vr(R + 2)))
    p('v_permlane32_swap_b32 %s, %s' % (vr(R + 1), vr(R + 3)))
    p('v_add_f32 %s, %s, %s' % (vr(R), vr(R), vr(R + 2)))
    p('v_add_f32 %s, %s, %s' % (vr(R + 1), vr(R + 1), vr(R + 3)))
    p('v_permlane32_swap_b32 %s, %s' % (vr(R), vr(R + 2)))
    p('v_permlane32_swap_b32 %s, %s' % (vr(R + 1), vr(R + 3)))
    for r in range(4):
        p('v_min_u32 %s, -2, %s' % (vr(R + r), vr(R + r)))
    p('v_lshlrev_b32 v5, 4, %s' % vr(vLane))
    p('s_mov_b32 exec_hi, 0')
    p('buffer_store_dwordx4 %s, v5, %s, %s offen sc1' % (vr(R, 4), sr(sWS, 4), sr(sSlot)))
    p('s_mov_b64 exec, -1')
    p('s_cmp_eq_u32 s3, 0')
    p('s_cbranch_scc0 L_END')
    p('s_waitcnt vmcnt(1)')
    p('L_FLAG:')
    p('v_readfirstlane_b32 s4, %s' % vr(vF))
    p('v_readfirstlane_b32 s5, %s' % vr(vF + 1))
    p('s_and_b32 s4, s4, s5')
    p('s_cmp_eq_u32 s4, 0x01010101')
    p('s_cbranch_scc1 L_FLAGOK')
    p('s_sub_u32 %s, %s, 1' % (sr(sCap), sr(sCap)))
    p('s_cbranch_scc1 L_FLAGOK')
    p('buffer_load_dwordx2 %s, %s, %s, 0 offen sc1' % (vr(vF, 2), vr(vFlagLd), sr(sDBG, 4)))
    p('s_waitcnt vmcnt(0)')
    p('s_branch L_FLAG')
    p('L_FLAGOK:')
    D = K
    ST = K + 16
    vIn, vSt = K + 18, K + 19
    p('v_lshrrev_b32 v5, 5, %s' % vr(vLane))
    p('v_and_b32 v6, 31, %s' % vr(vLane))
    p('v_lshlrev_b32 v6, 4, v6')
    p('v_lshl_add_u32 %s, v5, 11, v6' % vr(vIn))
    p('v_lshl_add_u32 v6, v5, 2, %s' % vr(vLane))
    p('v_and_b32 v6, 7, v6')
    p('v_lshlrev_b32 v6, 4, v6')
    p('v_add_u32 %s, 4096, v6' % vr(vSt))
    p('s_mov_b32 %s, 0x10000' % sr(sCap))
    p('L_POLL:')
    for i in range(4):
        p('buffer_load_dwordx4 %s, %s, %s, %s offen offset:%d sc1' % (vr(D + 4 * i, 4), vr(vIn), sr(sWS, 4), sr(sInb), i * 512))
    p('buffer_load_dwordx2 %s, %s, %s, %s offen sc1' % (vr(ST, 2), vr(vSt), sr(sWS, 4), sr(sInb)))
    p('s_waitcnt vmcnt(0)')
    mx = K + 20
    p('v_max3_u32 %s, %s, %s, %s' % (vr(mx), vr(D), vr(D + 1), vr(D + 2)))
    for k in range(3, 17, 2):
        p('v_max3_u32 %s, %s, %s, %s' % (vr(mx), vr(mx), vr(D + k), vr(D + k + 1)))
    p('v_max_u32 %s, %s, %s' % (vr(mx), vr(mx), vr(ST + 1)))
    p('v_cmp_eq_u32 vcc, -1, %s' % vr(mx))
    p('s_cbranch_vccz L_READY')
    p('s_sub_u32 %s, %s, 1' % (sr(sCap), sr(sCap)))
    p('s_cbranch_scc0 L_POLL')
    p('L_READY:')
    Mx, f, ft, fl, r = K + 21, K + 22, K + 23, K + 24, K + 25
    p('v_max_f32_dpp %s, %s, %s quad_perm:[1,0,3,2] row_mask:0xf bank_mask:0xf' % (vr(Mx), vr(ST), vr(ST)))
    p('v_max_f32_dpp %s, %s, %s quad_perm:[2,3,0,1] row_mask:0xf bank_mask:0xf' % (vr(Mx), vr(Mx), vr(Mx)))
    p('v_max_f32_dpp %s, %s, %s row_half_mirror row_mask:0xf bank_mask:0xf' % (vr(Mx), vr(Mx), vr(Mx)))
    p('v_max_f32 %s, %s, v246' % (vr(Mx), vr(Mx)))
    p('v_sub_f32 %s, %s, %s' % (vr(f), vr(ST), vr(Mx)))
    p('v_sub_f32 %s, v246, %s' % (vr(ft), vr(Mx)))
    p('v_exp_f32 %s, %s' % (vr(f), vr(f)))
    p('v_exp_f32 %s, %s' % (vr(ft), vr(ft)))
    p('v_mul_f32 %s, %s, %s' % (vr(fl), vr(f), vr(ST + 1)))
    p('v_add_f32_dpp %s, %s, %s quad_perm:[1,0,3,2] row_mask:0xf bank_mask:0xf' % (vr(fl), vr(fl), vr(fl)))
    p('v_add_f32_dpp %s, %s, %s quad_perm:[2,3,0,1] row_mask:0xf bank_mask:0xf' % (vr(fl), vr(fl), vr(fl)))
    p('v_add_f32_dpp %s, %s, %s row_half_mirror row_mask:0xf bank_mask:0xf' % (vr(fl), vr(fl), vr(fl)))
    p('v_add_f32 %s, %s, %s' % (vr(fl), vr(fl), vr(ft)))
    p('v_rcp_f32 %s, %s' % (vr(r), vr(fl)))
    p('v_mul_f32 %s, %s, %s' % (vr(f), vr(f), vr(r)))
    p('v_mul_f32 %s, %s, %s' % (vr(ft), vr(ft), vr(r)))
    A = K + 28
    for i in range(4):
        for k in range(4):
            op = 'v_mul_f32_dpp' if i == 0 else 'v_fmac_f32_dpp'
            p('%s %s, %s, %s row_newbcast:%d row_mask:0xf bank_mask:0xf' % (op, vr(A + k), vr(f), vr(D + 4 * i + k), i))
    p('v_permlane32_swap_b32 %s, %s' % (vr(A), vr(A + 2)))
    p('v_permlane32_swap_b32 %s, %s' % (vr(A + 1), vr(A + 3)))
    p('v_add_f32 %s, %s, %s' % (vr(A), vr(A), vr(A + 2)))
    p('v_add_f32 %s, %s, %s' % (vr(A + 1), vr(A + 1), vr(A + 3)))
    p('v_fmac_f32 %s, %s, %s' % (vr(A), vr(ft), vr(vVT0)))
    p('v_fmac_f32 %s, %s, %s' % (vr(A + 1), vr(ft), vr(vVT1)))
    p('v_cvt_pk_bf16_f32 %s, %s, %s' % (vr(A), vr(A), vr(A + 1)))
    p('s_lshl_b32 s4, s2, 8')
    p('buffer_store_short %s, v247, %s, s4 offen' % (vr(A), sr(sOUT, 4)))
    p('buffer_store_short_d16_hi %s, v247, %s, s4 offen offset:16' % (vr(A), sr(sOUT, 4)))
    p('L_END:')
    p('s_endpgm')
    body = p.text(verbose=opt.verbose)
    out = HEADER
    out += '; Override launch geometry by editing the next line (default: block=256,\n'
    out += '; grid=ceil(out_elems/256), lds=0). Harness parses it; keep it on one line.\n'
    out += '; @launch grid=(256,1,1) block=(512,1,1) lds=%d\n' % (LDS_O + 8 * 4224)
    out += '.amdgcn_target "amdgcn-amd-amdhsa--gfx950"\n.text\n.globl %s_kernel\n.p2align 8\n.type %s_kernel,@function\n%s_kernel:\n' % (NAME, NAME, NAME)
    out += body
    out += '.section .rodata,"a"\n.p2align 6\n.amdhsa_kernel %s_kernel\n' % NAME
    out += '  .amdhsa_next_free_vgpr 248\n  .amdhsa_next_free_sgpr 72\n  .amdhsa_accum_offset 248\n'
    out += '  .amdhsa_group_segment_fixed_size 0\n  .amdhsa_kernarg_size 72\n  .amdhsa_user_sgpr_count 2\n'
    out += '  .amdhsa_user_sgpr_kernarg_segment_ptr 1\n  .amdhsa_system_sgpr_workgroup_id_x 1\n.end_amdhsa_kernel\n'
    return out


if __name__ == '__main__':
    ap = argparse.ArgumentParser()
    ap.add_argument('-o', default='cdna_kernels/%s.s' % NAME)
    ap.add_argument('--nt', action='store_true')
    ap.add_argument('--knat', action='store_true')
    ap.add_argument('--bar0', action='store_true')
    ap.add_argument('--verbose', action='store_true')
    opt = ap.parse_args()
    open(opt.o, 'w').write(gen(opt))
    print('wrote', opt.o)
```

```python
import sys, struct, math, argparse
from asmlib import Prog

NAME = 'standalone__tree_speculative_verify_tree_attention_over_candidate_token_tree__decode'
HEADER = open('cdna_kernels/%s.s.ref' % NAME).read().split('; Override launch')[0]


def f2u(x):
    return struct.unpack('<I', struct.pack('<f', x))[0]


def vr(a, n=1):
    return 'v%d' % a if n == 1 else 'v[%d:%d]' % (a, a + n - 1)


def sr(a, n=1):
    return 's%d' % a if n == 1 else 's[%d:%d]' % (a, a + n - 1)


INBOX = 4224
OOB = 0x7ff00000


def gen(opt):
    p = Prog()
    nt = ' nt' if opt.nt else ''
    sQ, sK, sV, sKT, sVT, sMK, sOUT, sDBG, sWS = 8, 12, 16, 20, 24, 28, 32, 36, 40
    sB = 44
    sQoff, sC, sPe, sPo = 48, 49, 50, 51
    sHi = 52
    sG, sS, sInb, sSlot, sT, sCap, sMrow, sStat = 54, 55, 56, 57, 58, 59, 60, 61
    sTmp = 62
    vLane, vK, vV, vQ = 1, 2, 3, 4
    Q, K, V, S, P, BT, O, L, ONES = 8, 24, 88, 152, 168, 176, 188, 220, 224
    X = 228
    vFlagSt, vFlagLd, vOne, vVT0, vVT1, vLw, vLr, vMc, vF = X, X + 1, X + 2, X + 3, X + 4, X + 5, X + 6, X + 7, X + 8
    T0 = X + 10
    LDS_MAX, LDS_L, LDS_O = 0, 256, 512
    C = math.log2(math.e) / math.sqrt(128.0)

    def stamp(i):
        if opt.prof:
            p('s_memrealtime s[%d:%d]' % (72 + 2 * i, 73 + 2 * i))

    def dump_stamps():
        if opt.prof:
            p('s_waitcnt lgkmcnt(0)')
            p('v_mov_b32 v6, 0')
            for i in range(14):
                p('v_writelane_b32 v6, s%d, %d' % (72 + 2 * i, i))
            p('v_writelane_b32 v6, %s, 14' % sr(sCap))
            p('s_lshl_b32 s4, s2, 3')
            p('s_add_u32 s4, s4, s3')
            p('s_lshl_b32 s4, s4, 6')
            p('s_add_u32 s4, s4, 0x8000000')
            p('v_lshlrev_b32 v5, 2, %s' % vr(vLane))
            p('s_mov_b64 exec, 0xffff')
            p('buffer_store_dword v6, v5, %s, s4 offen' % sr(sWS, 4))
            p('s_mov_b64 exec, -1')

    p('s_cmp_ge_u32 s2, 256')
    p('s_cbranch_scc1 L_END')
    if opt.prof:
        for i in range(14):
            p('s_mov_b32 s%d, 0' % (72 + 2 * i))
    stamp(0)
    for srd, off in ((sK, 8), (sQ, 0), (sV, 16), (sWS, 64), (sKT, 24), (sVT, 32), (sMK, 40), (sOUT, 48), (sDBG, 56)):
        p('s_load_dwordx2 %s, s[0:1], %d' % (sr(srd, 2), off))
    for srd, size in ((sK, 0x2000000), (sQ, 65536), (sV, 0x2000000), (sWS, 0x10000000), (sKT, 8192), (sVT, 8192),
                      (sMK, 16), (sOUT, 65536), (sDBG, 256)):
        p('s_mov_b32 %s, 0x%x' % (sr(srd + 2), size))
        p('s_mov_b32 %s, 0x20000' % sr(srd + 3))
    p('v_lshrrev_b32 v5, 6, v0')
    p('v_and_b32 %s, 63, v0' % vr(vLane))
    p('v_readfirstlane_b32 s3, v5')
    p('v_and_b32 v5, 3, v0')
    p('v_bfe_u32 v6, v0, 2, 2')
    p('v_lshl_or_b32 v5, v5, 2, v6')
    p('v_bfe_u32 v6, v0, 4, 2')
    p('v_lshlrev_b32 v6, 4, v6')
    if opt.knat:
        p('v_lshlrev_b32 %s, 4, %s' % (vr(vK), vr(vLane)))
    else:
        p('v_lshl_or_b32 %s, v5, 8, v6' % vr(vK))
    p('v_and_b32 v5, 7, v0')
    p('v_lshl_or_b32 %s, v5, 8, v6' % vr(vQ))
    p('v_lshlrev_b32 %s, 4, %s' % (vr(vV), vr(vLane)))
    p('s_lshr_b32 %s, s2, 3' % sr(sG))
    p('s_and_b32 %s, s2, 7' % sr(sS))
    p('s_lshl_b32 s4, s2, 17')
    p('s_lshl_b32 s5, s3, 14')
    p('s_add_u32 %s, s4, s5' % sr(sB))
    p('s_add_u32 %s, %s, 4096' % (sr(sB + 1), sr(sB)))
    p('s_add_u32 %s, %s, 8192' % (sr(sB + 2), sr(sB)))
    p('s_add_u32 %s, %s, 12288' % (sr(sB + 3), sr(sB)))
    p('s_lshl_b32 %s, %s, 11' % (sr(sQoff), sr(sG)))
    p('s_mul_i32 s4, %s, %d' % (sr(sG), 8 * INBOX))
    p('s_lshl_b32 s5, %s, 9' % sr(sS))
    p('s_add_u32 %s, s4, s5' % sr(sTmp))
    p('s_lshl_b32 s5, %s, 4' % sr(sS))
    p('s_add_u32 s4, s4, s5')
    p('s_add_u32 %s, s4, 4096' % sr(sTmp + 1))
    p('s_mul_i32 s5, s3, %d' % INBOX)
    p('s_add_u32 %s, %s, s5' % (sr(sSlot), sr(sTmp)))
    p('s_add_u32 %s, %s, s5' % (sr(sStat), sr(sTmp + 1)))
    p('s_mul_i32 %s, s2, %d' % (sr(sInb), INBOX))
    p('v_mov_b32 v247, 0')
    p('s_cmp_eq_u32 s3, 0')
    p('s_waitcnt lgkmcnt(0)')
    stamp(1)
    p('s_cbranch_scc0 L_ISSUE')
    p('v_mov_b32 v240, -1')
    p('v_mov_b32 v241, -1')
    p('v_mov_b32 v242, -1')
    p('v_mov_b32 v243, -1')
    p('v_lshrrev_b32 v5, 5, %s' % vr(vLane))
    p('v_and_b32 v6, 31, %s' % vr(vLane))
    p('v_mul_u32_u24 v7, %d, v5' % (4 * INBOX))
    p('v_lshl_add_u32 v7, v6, 4, v7')
    for i in range(4):
        if i:
            p('s_add_u32 %s, %s, %d' % (sr(sTmp), sr(sTmp), INBOX))
        p('buffer_store_dwordx4 v[240:243], v7, %s, %s offen sc1' % (sr(sWS, 4), sr(sTmp)))
    p('v_mul_u32_u24 v7, %d, %s' % (INBOX, vr(vLane)))
    p('s_mov_b64 exec, 0xff')
    p('buffer_store_dwordx4 v[240:243], v7, %s, %s offen sc1' % (sr(sWS, 4), sr(sTmp + 1)))
    p('s_mov_b64 exec, -1')
    p('v_lshlrev_b32 v7, 2, %s' % vr(vLane))
    p('s_lshl_b32 s4, s2, 8')
    p('buffer_load_dword v244, v7, %s, s4 offen' % sr(sQ, 4))
    p('s_lshl_b32 s5, %s, 8' % sr(sG))
    p('buffer_load_dword v245, v7, %s, s5 offen' % sr(sKT, 4))
    p('s_lshr_b32 s4, %s, 2' % sr(sG))
    p('s_lshl_b32 s4, s4, 1')
    p('v_mov_b32 v7, 0')
    p('buffer_load_ushort v246, v7, %s, s4 offen' % sr(sMK, 4))
    p('v_and_b32 v7, 3, v6')
    p('v_lshlrev_b32 v7, 1, v7')
    p('v_add_u32 v7, v7, v5')
    p('v_lshrrev_b32 v6, 2, v6')
    p('v_lshl_add_u32 v7, v7, 4, v6')
    p('v_lshlrev_b32 v247, 1, v7')
    p('buffer_load_ushort %s, v247, %s, s5 offen' % (vr(vVT0), sr(sVT, 4)))
    p('buffer_load_ushort %s, v247, %s, s5 offen offset:16' % (vr(vVT1), sr(sVT, 4)))
    p('L_ISSUE:')
    for sl in range(4):
        p('buffer_load_dwordx4 %s, %s, %s, %s offen offset:%d' % (vr(Q + 4 * sl, 4), vr(vQ), sr(sQ, 4), sr(sQoff), sl * 64))
    for T in range(4):
        for sl in range(4):
            off = sl * 1024 if opt.knat else sl * 64
            p('buffer_load_dwordx4 %s, %s, %s, %s offen offset:%d%s' % (vr(K + 16 * T + 4 * sl, 4), vr(vK), sr(sK, 4), sr(sB + T), off, nt))
    if opt.bar0:
        p('s_barrier')
    for u in range(2):
        for j in range(8):
            p('buffer_load_dwordx4 %s, %s, %s, %s offen offset:%d%s' % (vr(V + 32 * u + 4 * j, 4), vr(vV), sr(sV, 4), sr(sB + 2 * u + (j >> 2)), (j & 3) * 1024, nt))
    stamp(2)
    p('s_mov_b32 %s, 0x%08x' % (sr(sC), f2u(C)))
    p('s_mov_b32 %s, 0x05040100' % sr(sPe))
    p('s_mov_b32 %s, 0x07060302' % sr(sPo))
    p('s_mov_b32 %s, 0xff00ff00' % sr(sHi))
    p('s_mov_b32 %s, 0xff00ff00' % sr(sHi + 1))
    p('s_mov_b32 %s, 0x10000' % sr(sCap))
    for r in range(4):
        p('v_mov_b32 %s, 0x3f803f80' % vr(ONES + r))
    p('v_mov_b32 %s, 1' % vr(vOne))
    p('v_mov_b32 v5, 0x%x' % OOB)
    p('v_mov_b32 v6, s2')
    p('v_cmp_eq_u32 vcc, 0, v0')
    p('v_cndmask_b32 %s, v5, v6, vcc' % vr(vFlagSt))
    p('s_lshl_b32 s4, %s, 3' % sr(sG))
    p('v_mov_b32 v6, s4')
    p('v_cndmask_b32 %s, v5, v6, vcc' % vr(vFlagLd))
    p('v_and_b32 v5, 7, v0')
    p('v_mul_u32_u24 v5, 528, v5')
    p('v_bfe_u32 v6, v0, 3, 1')
    p('v_lshl_add_u32 v5, v6, 8, v5')
    p('v_bfe_u32 v6, v0, 4, 2')
    p('v_lshl_add_u32 v5, v6, 4, v5')
    p('s_mul_i32 s4, s3, 4224')
    p('s_add_u32 s4, s4, %d' % LDS_O)
    p('v_add_u32 %s, s4, v5' % vr(vLw))
    p('v_lshrrev_b32 v5, 5, %s' % vr(vLane))
    p('v_mul_u32_u24 v5, %d, v5' % (4 * 4224))
    p('v_and_b32 v6, 31, %s' % vr(vLane))
    p('v_lshl_add_u32 v5, v6, 4, v5')
    p('s_mul_i32 s4, s3, 528')
    p('s_add_u32 s4, s4, %d' % LDS_O)
    p('v_add_u32 %s, s4, v5' % vr(vLr))
    p('s_cmp_eq_u32 s3, 0')
    p('s_cbranch_scc0 L_NOTREE')
    p('s_waitcnt vmcnt(36)')
    p('v_lshlrev_b32 v5, 16, v244')
    p('v_and_b32 v244, 0xffff0000, v244')
    p('v_lshlrev_b32 v6, 16, v245')
    p('v_and_b32 v245, 0xffff0000, v245')
    p('v_mul_f32 v5, v5, v6')
    p('v_fmac_f32 v5, v244, v245')
    p('v_add_f32_dpp v5, v5, v5 row_shr:1 row_mask:0xf bank_mask:0xf bound_ctrl:0')
    p('v_add_f32_dpp v5, v5, v5 row_shr:2 row_mask:0xf bank_mask:0xf bound_ctrl:0')
    p('v_add_f32_dpp v5, v5, v5 row_shr:4 row_mask:0xf bank_mask:0xf bound_ctrl:0')
    p('v_add_f32_dpp v5, v5, v5 row_shr:8 row_mask:0xf bank_mask:0xf bound_ctrl:0')
    p('v_add_f32_dpp v5, v5, v5 row_bcast:15 row_mask:0xa bank_mask:0xf')
    p('v_add_f32_dpp v5, v5, v5 row_bcast:31 row_mask:0xc bank_mask:0xf')
    p('v_lshlrev_b32 v246, 16, v246')
    p('v_sub_f32 v246, 1.0, v246')
    p('v_mul_f32 v246, 0x%08x, v246' % f2u(-1.0e9 * math.log2(math.e)))
    p('v_readlane_b32 s4, v5, 63')
    p('v_lshlrev_b32 %s, 16, %s' % (vr(vVT0), vr(vVT0)))
    p('v_lshlrev_b32 %s, 16, %s' % (vr(vVT1), vr(vVT1)))
    p('v_mov_b32 v5, s4')
    p('v_mul_f32 v5, %s, v5' % sr(sC))
    p('v_add_f32 v246, v5, v246')
    p('L_NOTREE:')
    p('buffer_store_byte %s, %s, %s, 0 offen sc1' % (vr(vOne), vr(vFlagSt), sr(sDBG, 4)))
    for T in range(4):
        p('s_waitcnt vmcnt(%d)' % (17 + (3 - T) * 4))
        if T == 0:
            stamp(3)
        if T == 3:
            stamp(4)
        for sl in range(4):
            src = '0' if sl == 0 else vr(S + 4 * T, 4)
            p('v_mfma_f32_16x16x32_bf16 %s, %s, %s, %s' % (vr(S + 4 * T, 4), vr(K + 16 * T + 4 * sl, 4), vr(Q + 4 * sl, 4), src))
    m = T0
    p('v_max3_f32 %s, %s, %s, %s' % (vr(m), vr(S), vr(S + 1), vr(S + 2)))
    p('v_max3_f32 %s, %s, %s, %s' % (vr(m), vr(m), vr(S + 3), vr(S + 4)))
    for k in range(5, 15, 2):
        p('v_max3_f32 %s, %s, %s, %s' % (vr(m), vr(m), vr(S + k), vr(S + k + 1)))
    p('v_max_f32 %s, %s, %s' % (vr(m), vr(m), vr(S + 15)))
    t = T0 + 1
    p('v_mov_b32 %s, %s' % (vr(t), vr(m)))
    p('v_permlane16_swap_b32 %s, %s' % (vr(m), vr(t)))
    p('v_max_f32 %s, %s, %s' % (vr(m), vr(m), vr(t)))
    p('v_mov_b32 %s, %s' % (vr(t), vr(m)))
    p('v_permlane32_swap_b32 %s, %s' % (vr(m), vr(t)))
    p('v_max_f32 %s, %s, %s' % (vr(m), vr(m), vr(t)))
    p('v_and_b32 v5, 7, v0')
    p('v_lshlrev_b32 v5, 5, v5')
    p('s_lshl_b32 s4, s3, 2')
    p('v_add_u32 v6, s4, v5')
    p('s_mov_b64 exec, 0xff')
    p('ds_write_b32 v6, %s offset:%d' % (vr(m), LDS_MAX))
    p('s_mov_b64 exec, -1')
    p('s_waitcnt lgkmcnt(0)')
    p('s_barrier')
    stamp(5)
    a = BT
    p('ds_read_b128 %s, v5 offset:%d' % (vr(a, 4), LDS_MAX))
    p('ds_read_b128 %s, v5 offset:%d' % (vr(a + 4, 4), LDS_MAX + 16))
    p('s_waitcnt lgkmcnt(0)')
    p('v_max3_f32 %s, %s, %s, %s' % (vr(m), vr(a), vr(a + 1), vr(a + 2)))
    p('v_max3_f32 %s, %s, %s, %s' % (vr(t), vr(a + 3), vr(a + 4), vr(a + 5)))
    p('v_max3_f32 %s, %s, %s, %s' % (vr(m), vr(m), vr(a + 6), vr(a + 7)))
    p('v_max_f32 %s, %s, %s' % (vr(m), vr(m), vr(t)))
    p('v_mul_f32 %s, %s, %s' % (vr(vMc), sr(sC), vr(m)))
    for k in range(16):
        p('v_fma_f32 %s, %s, %s, -%s' % (vr(S + k), vr(S + k), sr(sC), vr(vMc)))
    for k in range(16):
        p('v_exp_f32 %s, %s' % (vr(S + k), vr(S + k)))
    for k in range(8):
        p('v_cvt_pk_bf16_f32 %s, %s, %s' % (vr(P + k), vr(S + 2 * k), vr(S + 2 * k + 1)))
    p('v_readlane_b32 %s, %s, s3' % (sr(sMrow), vr(vMc)))
    p('v_mfma_f32_16x16x32_bf16 %s, %s, %s, 0' % (vr(L, 4), vr(ONES, 4), vr(P, 4)))
    p('v_mfma_f32_16x16x32_bf16 %s, %s, %s, %s' % (vr(L, 4), vr(ONES, 4), vr(P + 4, 4), vr(L, 4)))
    p('s_mov_b64 exec, 0xff')
    p('ds_write_b32 v6, %s offset:%d' % (vr(L), LDS_L))
    p('s_mov_b64 exec, -1')
    p('s_waitcnt lgkmcnt(0)')
    p('s_barrier')
    stamp(6)
    p('s_lshl_b32 s4, s3, 5')
    p('v_mov_b32 v5, s4')
    p('ds_read_b128 %s, v5 offset:%d' % (vr(a, 4), LDS_L))
    p('ds_read_b128 %s, v5 offset:%d' % (vr(a + 4, 4), LDS_L + 16))
    p('s_waitcnt lgkmcnt(0)')
    p('v_pk_add_f32 %s, %s, %s' % (vr(a, 2), vr(a, 2), vr(a + 2, 2)))
    p('v_pk_add_f32 %s, %s, %s' % (vr(a + 4, 2), vr(a + 4, 2), vr(a + 6, 2)))
    p('v_pk_add_f32 %s, %s, %s' % (vr(a, 2), vr(a, 2), vr(a + 4, 2)))
    p('v_add_f32 %s, %s, %s' % (vr(a + 1), vr(a), vr(a + 1)))
    p('v_mov_b32 %s, %s' % (vr(a), sr(sMrow)))
    p('v_min_u32 %s, -2, %s' % (vr(a), vr(a)))
    p('v_min_u32 %s, -2, %s' % (vr(a + 1), vr(a + 1)))
    p('v_mov_b32 v5, 0')
    p('s_mov_b64 exec, 1')
    p('buffer_store_dwordx2 %s, v5, %s, %s offen sc1' % (vr(a, 2), sr(sWS, 4), sr(sStat)))
    p('s_mov_b64 exec, -1')
    order = [0, 4, 1, 5, 2, 6, 3, 7]

    def perms(u, e, dst):
        sel = sPo if (e & 1) else sPe
        for r in range(4):
            hi = V + 32 * u + 4 * (2 * r + 1) + (e >> 1)
            lo = V + 32 * u + 4 * (2 * r) + (e >> 1)
            p('v_perm_b32 %s, %s, %s, %s' % (vr(dst + r), vr(hi), vr(lo), sr(sel)))

    def pv(u):
        sets = [BT + 4, BT + 8, BT]
        perms(u, order[0], sets[0])
        for idx, e in enumerate(order):
            if idx + 1 < 8:
                perms(u, order[idx + 1], sets[(idx + 1) % 3])
            src = '0' if u == 0 else vr(O + 4 * e, 4)
            p('v_mfma_f32_16x16x32_bf16 %s, %s, %s, %s' % (vr(O + 4 * e, 4), vr(sets[idx % 3], 4), vr(P + 4 * u, 4), src))

    p('s_waitcnt vmcnt(10)')
    stamp(7)
    pv(0)
    p('buffer_load_dwordx2 %s, %s, %s, 0 offen sc1' % (vr(vF, 2), vr(vFlagLd), sr(sDBG, 4)))
    p('s_waitcnt vmcnt(3)')
    stamp(8)
    pv(1)
    for e in range(4):
        for i in range(4):
            p('v_cndmask_b32 %s, %s, %s, %s' % (vr(O + 4 * e + i), vr(O + 4 * e + i), vr(O + 4 * (e + 4) + i), sr(sHi, 2)))
        p('ds_write_b128 %s, %s offset:%d' % (vr(vLw), vr(O + 4 * e, 4), e * 64))
    p('s_waitcnt lgkmcnt(0)')
    p('s_barrier')
    stamp(9)
    R = S
    for i in range(4):
        p('ds_read_b128 %s, %s offset:%d' % (vr(R + 4 * i, 4), vr(vLr), i * 4224))
    p('s_waitcnt lgkmcnt(2)')
    p('v_pk_add_f32 %s, %s, %s' % (vr(R, 2), vr(R, 2), vr(R + 4, 2)))
    p('v_pk_add_f32 %s, %s, %s' % (vr(R + 2, 2), vr(R + 2, 2), vr(R + 6, 2)))
    p('s_waitcnt lgkmcnt(0)')
    p('v_pk_add_f32 %s, %s, %s' % (vr(R + 8, 2), vr(R + 8, 2), vr(R + 12, 2)))
    p('v_pk_add_f32 %s, %s, %s' % (vr(R + 10, 2), vr(R + 10, 2), vr(R + 14, 2)))
    p('v_pk_add_f32 %s, %s, %s' % (vr(R, 2), vr(R, 2), vr(R + 8, 2)))
    p('v_pk_add_f32 %s, %s, %s' % (vr(R + 2, 2), vr(R + 2, 2), vr(R + 10, 2)))
    p('v_permlane32_swap_b32 %s, %s' % (vr(R), vr(R + 2)))
    p('v_permlane32_swap_b32 %s, %s' % (vr(R + 1), vr(R + 3)))
    p('v_add_f32 %s, %s, %s' % (vr(R), vr(R), vr(R + 2)))
    p('v_add_f32 %s, %s, %s' % (vr(R + 1), vr(R + 1), vr(R + 3)))
    p('v_permlane32_swap_b32 %s, %s' % (vr(R), vr(R + 2)))
    p('v_permlane32_swap_b32 %s, %s' % (vr(R + 1), vr(R + 3)))
    for r in range(4):
        p('v_min_u32 %s, -2, %s' % (vr(R + r), vr(R + r)))
    p('v_lshlrev_b32 v5, 4, %s' % vr(vLane))
    p('s_mov_b32 exec_hi, 0')
    p('buffer_store_dwordx4 %s, v5, %s, %s offen sc1' % (vr(R, 4), sr(sWS, 4), sr(sSlot)))
    p('s_mov_b64 exec, -1')
    stamp(10)
    p('s_cmp_eq_u32 s3, 0')
    if opt.prof:
        p('s_cbranch_scc1 L_CONS')
        dump_stamps()
        p('s_endpgm')
        p('L_CONS:')
    else:
        p('s_cbranch_scc0 L_END')
    p('s_waitcnt vmcnt(1)')
    p('L_FLAG:')
    p('v_readfirstlane_b32 s4, %s' % vr(vF))
    p('v_readfirstlane_b32 s5, %s' % vr(vF + 1))
    p('s_and_b32 s4, s4, s5')
    p('s_cmp_eq_u32 s4, 0x01010101')
    p('s_cbranch_scc1 L_FLAGOK')
    p('s_sub_u32 %s, %s, 1' % (sr(sCap), sr(sCap)))
    p('s_cbranch_scc1 L_FLAGOK')
    p('buffer_load_dwordx2 %s, %s, %s, 0 offen sc1' % (vr(vF, 2), vr(vFlagLd), sr(sDBG, 4)))
    p('s_waitcnt vmcnt(0)')
    p('s_branch L_FLAG')
    p('L_FLAGOK:')
    stamp(11)
    D = K
    ST = K + 16
    vIn, vSt = K + 18, K + 19
    p('v_lshrrev_b32 v5, 5, %s' % vr(vLane))
    p('v_and_b32 v6, 31, %s' % vr(vLane))
    p('v_lshlrev_b32 v6, 4, v6')
    p('v_lshl_add_u32 %s, v5, 11, v6' % vr(vIn))
    p('v_lshl_add_u32 v6, v5, 2, %s' % vr(vLane))
    p('v_and_b32 v6, 7, v6')
    p('v_lshlrev_b32 v6, 4, v6')
    p('v_add_u32 %s, 4096, v6' % vr(vSt))
    p('s_mov_b32 %s, 0x10000' % sr(sCap))
    p('L_POLL:')
    for i in range(4):
        p('buffer_load_dwordx4 %s, %s, %s, %s offen offset:%d sc1' % (vr(D + 4 * i, 4), vr(vIn), sr(sWS, 4), sr(sInb), i * 512))
    p('buffer_load_dwordx2 %s, %s, %s, %s offen sc1' % (vr(ST, 2), vr(vSt), sr(sWS, 4), sr(sInb)))
    p('s_waitcnt vmcnt(0)')
    mx = K + 20
    p('v_max3_u32 %s, %s, %s, %s' % (vr(mx), vr(D), vr(D + 1), vr(D + 2)))
    for k in range(3, 17, 2):
        p('v_max3_u32 %s, %s, %s, %s' % (vr(mx), vr(mx), vr(D + k), vr(D + k + 1)))
    p('v_max_u32 %s, %s, %s' % (vr(mx), vr(mx), vr(ST + 1)))
    p('v_cmp_eq_u32 vcc, -1, %s' % vr(mx))
    p('s_cbranch_vccz L_READY')
    p('s_sub_u32 %s, %s, 1' % (sr(sCap), sr(sCap)))
    p('s_cbranch_scc0 L_POLL')
    p('L_READY:')
    stamp(12)
    Mx, f, ft, fl, r = K + 21, K + 22, K + 23, K + 24, K + 25
    p('v_max_f32_dpp %s, %s, %s quad_perm:[1,0,3,2] row_mask:0xf bank_mask:0xf' % (vr(Mx), vr(ST), vr(ST)))
    p('v_max_f32_dpp %s, %s, %s quad_perm:[2,3,0,1] row_mask:0xf bank_mask:0xf' % (vr(Mx), vr(Mx), vr(Mx)))
    p('v_max_f32_dpp %s, %s, %s row_half_mirror row_mask:0xf bank_mask:0xf' % (vr(Mx), vr(Mx), vr(Mx)))
    p('v_max_f32 %s, %s, v246' % (vr(Mx), vr(Mx)))
    p('v_sub_f32 %s, %s, %s' % (vr(f), vr(ST), vr(Mx)))
    p('v_sub_f32 %s, v246, %s' % (vr(ft), vr(Mx)))
    p('v_exp_f32 %s, %s' % (vr(f), vr(f)))
    p('v_exp_f32 %s, %s' % (vr(ft), vr(ft)))
    p('v_mul_f32 %s, %s, %s' % (vr(fl), vr(f), vr(ST + 1)))
    p('v_add_f32_dpp %s, %s, %s quad_perm:[1,0,3,2] row_mask:0xf bank_mask:0xf' % (vr(fl), vr(fl), vr(fl)))
    p('v_add_f32_dpp %s, %s, %s quad_perm:[2,3,0,1] row_mask:0xf bank_mask:0xf' % (vr(fl), vr(fl), vr(fl)))
    p('v_add_f32_dpp %s, %s, %s row_half_mirror row_mask:0xf bank_mask:0xf' % (vr(fl), vr(fl), vr(fl)))
    p('v_add_f32 %s, %s, %s' % (vr(fl), vr(fl), vr(ft)))
    p('v_rcp_f32 %s, %s' % (vr(r), vr(fl)))
    p('v_mul_f32 %s, %s, %s' % (vr(f), vr(f), vr(r)))
    p('v_mul_f32 %s, %s, %s' % (vr(ft), vr(ft), vr(r)))
    A = K + 28
    for i in range(4):
        for k in range(4):
            op = 'v_mul_f32_dpp' if i == 0 else 'v_fmac_f32_dpp'
            p('%s %s, %s, %s row_newbcast:%d row_mask:0xf bank_mask:0xf' % (op, vr(A + k), vr(f), vr(D + 4 * i + k), i))
    p('v_permlane32_swap_b32 %s, %s' % (vr(A), vr(A + 2)))
    p('v_permlane32_swap_b32 %s, %s' % (vr(A + 1), vr(A + 3)))
    p('v_add_f32 %s, %s, %s' % (vr(A), vr(A), vr(A + 2)))
    p('v_add_f32 %s, %s, %s' % (vr(A + 1), vr(A + 1), vr(A + 3)))
    p('v_fmac_f32 %s, %s, %s' % (vr(A), vr(ft), vr(vVT0)))
    p('v_fmac_f32 %s, %s, %s' % (vr(A + 1), vr(ft), vr(vVT1)))
    p('v_cvt_pk_bf16_f32 %s, %s, %s' % (vr(A), vr(A), vr(A + 1)))
    p('s_lshl_b32 s4, s2, 8')
    p('buffer_store_short %s, v247, %s, s4 offen' % (vr(A), sr(sOUT, 4)))
    p('buffer_store_short_d16_hi %s, v247, %s, s4 offen offset:16' % (vr(A), sr(sOUT, 4)))
    stamp(13)
    dump_stamps()
    p('L_END:')
    p('s_endpgm')
    body = p.text(verbose=opt.verbose)
    out = HEADER
    out += '; Override launch geometry by editing the next line (default: block=256,\n'
    out += '; grid=ceil(out_elems/256), lds=0). Harness parses it; keep it on one line.\n'
    out += '; @launch grid=(256,1,1) block=(512,1,1) lds=%d\n' % (LDS_O + 8 * 4224)
    out += '.amdgcn_target "amdgcn-amd-amdhsa--gfx950"\n.text\n.globl %s_kernel\n.p2align 8\n.type %s_kernel,@function\n%s_kernel:\n' % (NAME, NAME, NAME)
    out += body
    out += '.section .rodata,"a"\n.p2align 6\n.amdhsa_kernel %s_kernel\n' % NAME
    out += '  .amdhsa_next_free_vgpr 248\n  .amdhsa_next_free_sgpr %d\n  .amdhsa_accum_offset 248\n' % (102 if opt.prof else 72)
    out += '  .amdhsa_group_segment_fixed_size 0\n  .amdhsa_kernarg_size 72\n  .amdhsa_user_sgpr_count 2\n'
    out += '  .amdhsa_user_sgpr_kernarg_segment_ptr 1\n  .amdhsa_system_sgpr_workgroup_id_x 1\n.end_amdhsa_kernel\n'
    return out


if __name__ == '__main__':
    ap = argparse.ArgumentParser()
    ap.add_argument('-o', default='cdna_kernels/%s.s' % NAME)
    ap.add_argument('--nt', action='store_true')
    ap.add_argument('--knat', action='store_true')
    ap.add_argument('--bar0', action='store_true')
    ap.add_argument('--verbose', action='store_true')
    ap.add_argument('--prof', action='store_true')
    opt = ap.parse_args()
    open(opt.o, 'w').write(gen(opt))
    print('wrote', opt.o)
```

```python
import sys, struct, math, argparse
from asmlib import Prog

NAME = 'standalone__tree_speculative_verify_tree_attention_over_candidate_token_tree__decode'
HEADER = open('cdna_kernels/%s.s.ref' % NAME).read().split('; Override launch')[0]


def f2u(x):
    return struct.unpack('<I', struct.pack('<f', x))[0]


def vr(a, n=1):
    return 'v%d' % a if n == 1 else 'v[%d:%d]' % (a, a + n - 1)


def sr(a, n=1):
    return 's%d' % a if n == 1 else 's[%d:%d]' % (a, a + n - 1)


INBOX = 4224
EPOCH = 256 * INBOX
STAMPS = ['entry', 'karg', 'kiss', 'K0', 'K7', 'sm', 'viss', 'vend', 'bar2', 'pub',
          'cflag', 'cstat', 'cpub', 'sready', 'dready', 'end']

LDS_STAT = 131072
LDS_F = LDS_STAT + 256
LDS_O = LDS_STAT + 512
LDS_SIZE = LDS_O + 4 * 4224


class VM:
    def __init__(self, p):
        self.p = p
        self.n = 0

    def issue(self, text):
        self.p(text)
        self.n += 1
        return self.n - 1

    def wait(self, idx):
        k = self.n - 1 - idx
        assert 0 <= k <= 63, k
        self.p('s_waitcnt vmcnt(%d)' % k)


def gen(opt):
    p = Prog()
    sK, sV, sQ, sWS, sOUT, sDBG, sKT, sVT, sMK = 8, 12, 16, 20, 24, 28, 32, 36, 40
    sBT = 44
    sC, sPe, sPo = 52, 53, 54
    sLW = 55
    sHi = 56
    sG, sS, sCap, sA, sB2, sOk = 58, 59, 60, 61, 62, 63
    sE, sT, sTb = 64, 65, 66
    C = math.log2(math.e) / math.sqrt(128.0)

    def stamp(name):
        if opt.prof:
            i = STAMPS.index(name)
            p('s_memrealtime s[%d:%d]' % (70 + 2 * i, 71 + 2 * i))

    def dump_stamps(vtmp=(5, 6)):
        if opt.prof:
            a, b = vtmp
            p('s_waitcnt lgkmcnt(0)')
            p('v_mov_b32 v%d, 0' % b)
            for i in range(16):
                p('v_writelane_b32 v%d, s%d, %d' % (b, 70 + 2 * i, i))
            p('s_lshl_b32 s4, s2, 3')
            p('s_add_u32 s4, s4, s3')
            p('s_lshl_b32 s4, s4, 6')
            p('s_add_u32 s4, s4, 0x8000000')
            p('v_lshlrev_b32 v%d, 2, v1' % a)
            p('s_mov_b64 exec, 0xffff')
            p('buffer_store_dword v%d, v%d, %s, s4 offen' % (b, a, sr(sWS, 4)))
            p('s_mov_b64 exec, -1')

    def srd(r, size):
        p('s_mov_b32 %s, 0x%x' % (sr(r + 2), size))
        p('s_mov_b32 %s, 0x20000' % sr(r + 3))

    p('s_cmp_ge_u32 s2, 256')
    p('s_cbranch_scc1 L_END')
    if opt.prof:
        for i in range(16):
            p('s_mov_b32 s%d, 0' % (70 + 2 * i))
    stamp('entry')
    if opt.map == 'xcd':
        p('s_and_b32 s4, s2, 7')
        p('s_lshl_b32 s4, s4, 5')
        p('s_bfe_u32 s5, s2, 0x20003')
        p('s_lshl_b32 s5, s5, 3')
        p('s_lshr_b32 s2, s2, 5')
        p('s_or_b32 s2, s2, s4')
        p('s_or_b32 s2, s2, s5')
    elif opt.map == 'xcd2':
        p('s_and_b32 s4, s2, 7')
        p('s_lshl_b32 s4, s4, 5')
        p('s_lshr_b32 s2, s2, 3')
        p('s_or_b32 s2, s2, s4')
    for r, off in ((sK, 8), (sV, 16), (sQ, 0), (sWS, 64)):
        p('s_load_dwordx2 %s, s[0:1], %d' % (sr(r, 2), off))
    p('v_lshrrev_b32 v5, 6, v0')
    p('v_and_b32 v1, 63, v0')
    p('v_readfirstlane_b32 s3, v5')
    srd(sK, 0x2000000)
    srd(sV, 0x2000000)
    srd(sQ, 65536)
    srd(sWS, 0x10000000)
    p('s_lshr_b32 %s, s2, 3' % sr(sG))
    p('s_and_b32 %s, s2, 7' % sr(sS))
    p('s_cmp_eq_u32 s3, 4')
    p('s_cbranch_scc1 L_CTRL')

    vK, vV, vQ = 2, 6, 7
    vRd = 8
    vLw, vLr, vFr, vPub = 12, 13, 14, 15
    S, ACC, L, ONES, T0 = 16, 32, 48, 52, 56
    B, AT, VA, VB = 60, 92, 104, 168
    QL, QH, KF = VB, VB + 16, VB + 32
    vm = VM(p)
    p('v_and_b32 v8, 15, v1')
    p('v_lshrrev_b32 v9, 4, v1')
    p('v_lshlrev_b32 v10, 2, v9')
    p('v_xor_b32 v10, v8, v10')
    p('v_lshlrev_b32 v11, 8, v9')
    p('v_lshl_or_b32 %s, v10, 4, v11' % vr(vK))
    for i in range(1, 4):
        p('v_xor_b32 %s, %d, %s' % (vr(vK + i), 16 * i, vr(vK)))
    p('s_lshl_b32 %s, s3, 15' % sr(sLW))
    p('s_lshl_b32 s4, s2, 17')
    p('s_add_u32 %s, s4, %s' % (sr(sBT), sr(sLW)))
    for T in range(1, 8):
        p('s_add_u32 %s, %s, %d' % (sr(sBT + T), sr(sBT), T * 4096))
    p('v_lshlrev_b32 %s, 4, v1' % vr(vV))
    p('s_lshl_b32 %s, %s, 7' % (sr(sOk), sr(sG)))
    p('s_add_u32 %s, %s, 0x%x' % (sr(sOk), sr(sOk), EPOCH))
    p('s_waitcnt lgkmcnt(0)')
    stamp('karg')
    if opt.epos == 0:
        p('s_buffer_load_dword %s, %s, %s' % (sr(sE), sr(sWS, 4), sr(sOk)))
    kidx = {}
    qidx = []

    def issue_q():
        for sl in range(4):
            qidx.append(vm.issue('buffer_load_dwordx4 %s, %s, %s, %s offen offset:%d' % (vr(QL + 4 * sl, 4), vr(vQ), sr(sQ, 4), sr(sA), sl * 64)))

    def setup_q():
        p('v_and_b32 v56, 7, v1')
        p('v_lshrrev_b32 v57, 4, v1')
        p('v_lshlrev_b32 v57, 4, v57')
        p('v_lshl_or_b32 %s, v56, 8, v57' % vr(vQ))
        p('s_lshl_b32 %s, %s, 11' % (sr(sA), sr(sG)))

    for T in range(8):
        p('s_add_u32 m0, %s, %d' % (sr(sLW), T * 4096))
        for i in range(4):
            kidx[(T, i)] = vm.issue('buffer_load_dwordx4 %s, %s, %s offen offset:%d lds' % (vr(vK + i), sr(sK, 4), sr(sBT + T), i * 1024))
        if T == opt.bar0 - 1:
            p('s_barrier')
        if T == opt.qpos - 1:
            setup_q()
            issue_q()
    stamp('kiss')
    if opt.epos == 1:
        p('s_buffer_load_dword %s, %s, %s' % (sr(sE), sr(sWS, 4), sr(sOk)))
    vidx = {}

    def vdst(j):
        return (VA + 4 * j) if j < 16 else (VB + 4 * (j - 16))

    def issue_v(j):
        vidx[j] = vm.issue('buffer_load_dwordx4 %s, %s, %s, %s offen offset:%d' % (vr(vdst(j), 4), vr(vV), sr(sV, 4), sr(sBT + (j >> 2)), (j & 3) * 1024))

    nv = [0]

    def issue_v_upto(n):
        while nv[0] < min(n, 16):
            issue_v(nv[0]); nv[0] += 1

    issue_v_upto(opt.vlead)
    p('s_mov_b32 %s, 0x%08x' % (sr(sC), f2u(C)))
    p('s_mov_b32 %s, 0x05040100' % sr(sPe))
    p('s_mov_b32 %s, 0x07060302' % sr(sPo))
    p('s_mov_b32 %s, 0xff00ff00' % sr(sHi))
    p('s_mov_b32 %s, 0xff00ff00' % sr(sHi + 1))
    for r in range(4):
        p('v_mov_b32 %s, 0x3f803f80' % vr(ONES + r))
    for r in range(32):
        p('v_mov_b32 %s, 0' % vr(B + r))
    p('v_and_b32 v56, 3, v1')
    p('v_bfe_u32 v57, v1, 2, 2')
    p('v_lshl_or_b32 v56, v56, 2, v57')
    p('v_and_b32 v57, 15, v1')
    p('v_lshrrev_b32 v58, 4, v1')
    p('v_xor_b32 v57, v57, v58')
    p('v_lshlrev_b32 v57, 4, v57')
    p('v_lshl_or_b32 v56, v56, 8, v57')
    p('v_add_u32 %s, %s, v56' % (vr(vRd), sr(sLW)))
    for sl in range(1, 4):
        p('v_xor_b32 %s, %d, %s' % (vr(vRd + sl), sl * 64, vr(vRd)))
    p('v_and_b32 v56, 7, v1')
    p('v_mul_u32_u24 v56, 528, v56')
    p('v_bfe_u32 v57, v1, 3, 1')
    p('v_lshl_add_u32 v56, v57, 8, v56')
    p('v_lshl_add_u32 v56, v58, 4, v56')
    p('s_mul_i32 s4, s3, 4224')
    p('s_add_u32 s4, s4, %d' % LDS_O)
    p('v_add_u32 %s, s4, v56' % vr(vLw))
    p('v_lshrrev_b32 v56, 5, v1')
    p('v_and_b32 v57, 31, v1')
    p('v_lshlrev_b32 v57, 4, v57')
    p('v_mul_u32_u24 v58, 528, v56')
    p('v_add_u32 v58, v58, v57')
    p('s_mul_i32 s4, s3, 1056')
    p('s_add_u32 s4, s4, %d' % LDS_O)
    p('v_add_u32 %s, s4, v58' % vr(vLr))
    p('s_lshl_b32 s4, s3, 5')
    p('s_add_u32 s4, s4, %d' % LDS_F)
    p('v_lshlrev_b32 v58, 4, v56')
    p('v_add_u32 %s, s4, v58' % vr(vFr))
    p('v_mul_u32_u24 v58, %d, v56' % INBOX)
    p('v_add_u32 %s, v58, v57' % vr(vPub))
    p('s_lshl_b32 s4, %s, 3' % sr(sG))
    p('s_lshl_b32 s5, s3, 1')
    p('s_add_u32 s4, s4, s5')
    p('s_mul_i32 s4, s4, %d' % INBOX)
    p('s_lshl_b32 s5, %s, 9' % sr(sS))
    p('s_add_u32 %s, s4, s5' % sr(sB2))
    for T in range(8):
        last = kidx[(T, 3)]
        if T == 0:
            last = max(last, qidx[-1])
        vm.wait(last)
        if T == 0:
            stamp('K0')
        if T == 7:
            stamp('K7')
        fs = KF + 16 * (T & 1)
        for sl in range(4):
            p('ds_read_b128 %s, %s offset:%d' % (vr(fs + 4 * sl, 4), vr(vRd + sl), T * 4096))
        if T == 0:
            for k in range(16):
                p('v_cndmask_b32 %s, 0, %s, %s' % (vr(QH + k), vr(QL + k), sr(sHi, 2)))
            for k in range(16):
                p('v_cndmask_b32 %s, %s, 0, %s' % (vr(QL + k), vr(QL + k), sr(sHi, 2)))
        issue_v_upto(opt.vlead + opt.vstep * (T + 1))

        def qk(T):
            fs = KF + 16 * (T & 1)
            q = QH if (T & 1) else QL
            acc = S + 4 * (T >> 1)
            for sl in range(4):
                src = '0' if (sl == 0 and not (T & 1)) else vr(acc, 4)
                p('v_mfma_f32_16x16x32_bf16 %s, %s, %s, %s' % (vr(acc, 4), vr(fs + 4 * sl, 4), vr(q + 4 * sl, 4), src))
        if T > 0:
            p('s_waitcnt lgkmcnt(4)')
            qk(T - 1)
    issue_v_upto(16)
    p('s_waitcnt lgkmcnt(0)')
    qk(7)
    m, t = T0, T0 + 1
    p('v_max3_f32 %s, %s, %s, %s' % (vr(m), vr(S), vr(S + 1), vr(S + 2)))
    p('v_max3_f32 %s, %s, %s, %s' % (vr(t), vr(S + 3), vr(S + 4), vr(S + 5)))
    p('v_max3_f32 %s, %s, %s, %s' % (vr(m), vr(m), vr(S + 6), vr(S + 7)))
    p('v_max3_f32 %s, %s, %s, %s' % (vr(t), vr(t), vr(S + 8), vr(S + 9)))
    p('v_max3_f32 %s, %s, %s, %s' % (vr(m), vr(m), vr(S + 10), vr(S + 11)))
    p('v_max3_f32 %s, %s, %s, %s' % (vr(t), vr(t), vr(S + 12), vr(S + 13)))
    p('v_max3_f32 %s, %s, %s, %s' % (vr(m), vr(m), vr(S + 14), vr(S + 15)))
    p('v_max_f32 %s, %s, %s' % (vr(m), vr(m), vr(t)))
    p('v_max_f32_dpp %s, %s, %s row_ror:8 row_mask:0xf bank_mask:0xf' % (vr(m), vr(m), vr(m)))
    p('v_mov_b32 %s, %s' % (vr(t), vr(m)))
    p('v_permlane16_swap_b32 %s, %s' % (vr(m), vr(t)))
    p('v_max_f32 %s, %s, %s' % (vr(m), vr(m), vr(t)))
    p('v_mov_b32 %s, %s' % (vr(t), vr(m)))
    p('v_permlane32_swap_b32 %s, %s' % (vr(m), vr(t)))
    p('v_max_f32 %s, %s, %s' % (vr(m), vr(m), vr(t)))
    vMc = T0 + 2
    p('v_mul_f32 %s, %s, %s' % (vr(vMc), sr(sC), vr(m)))
    for k in range(16):
        p('v_fma_f32 %s, %s, %s, -%s' % (vr(S + k), vr(S + k), sr(sC), vr(vMc)))
    for k in range(16):
        p('v_exp_f32 %s, %s' % (vr(S + k), vr(S + k)))
    BL = lambda u: B + 8 * u
    BH = lambda u: B + 8 * u + 4
    p('s_mov_b64 exec, 0x00ff00ff00ff00ff') if False else None
    p('s_not_b64 exec, %s' % sr(sHi, 2))
    for u in range(4):
        p('v_cvt_pk_bf16_f32 %s, %s, %s' % (vr(BL(u)), vr(S + 4 * u), vr(S + 4 * u + 1)))
        p('v_cvt_pk_bf16_f32 %s, %s, %s' % (vr(BL(u) + 1), vr(S + 4 * u + 2), vr(S + 4 * u + 3)))
    p('s_mov_b64 exec, %s' % sr(sHi, 2))
    for u in range(4):
        p('v_cvt_pk_bf16_f32 %s, %s, %s' % (vr(BH(u) + 2), vr(S + 4 * u), vr(S + 4 * u + 1)))
        p('v_cvt_pk_bf16_f32 %s, %s, %s' % (vr(BH(u) + 3), vr(S + 4 * u + 2), vr(S + 4 * u + 3)))
    p('s_mov_b64 exec, -1')
    for u in range(4):
        p('v_mov_b32_dpp %s, %s row_ror:8 row_mask:0xf bank_mask:0x3' % (vr(BL(u) + 2), vr(BH(u) + 2)))
        p('v_mov_b32_dpp %s, %s row_ror:8 row_mask:0xf bank_mask:0x3' % (vr(BL(u) + 3), vr(BH(u) + 3)))
    for u in range(4):
        p('v_mov_b32_dpp %s, %s row_ror:8 row_mask:0xf bank_mask:0xc' % (vr(BH(u)), vr(BL(u))))
        p('v_mov_b32_dpp %s, %s row_ror:8 row_mask:0xf bank_mask:0xc' % (vr(BH(u) + 1), vr(BL(u) + 1)))
    for u in range(4):
        p('v_mfma_f32_16x16x32_bf16 %s, %s, %s, %s' % (vr(L, 4), vr(ONES, 4), vr(BL(u), 4), '0' if u == 0 else vr(L, 4)))
    def statw():
        p('v_lshlrev_b32 %s, 5, v1' % vr(t))
        p('s_lshl_b32 s4, s3, 3')
        p('s_add_u32 s4, s4, %d' % LDS_STAT)
        p('v_add_u32 %s, s4, %s' % (vr(t), vr(t)))
        p('v_min_u32 %s, -2, %s' % (vr(vMc), vr(vMc)))
        p('v_min_u32 %s, -2, %s' % (vr(vMc + 1), vr(L)))
        p('s_mov_b64 exec, 0xff')
        p('ds_write_b64 %s, %s' % (vr(t), vr(vMc, 2)))
        p('s_mov_b64 exec, -1')
    if not opt.statafter:
        statw()
    stamp('sm')
    for j in range(16, 32):
        issue_v(j)
    if opt.statafter:
        statw()
    stamp('viss')
    vTag = T0
    p('s_add_u32 %s, %s, 1' % (sr(sT), sr(sE)))
    for k in range(4):
        p('s_mov_b32 %s, 0x%08x' % (sr(sTb + k), 0x07060500 | k))
    p('v_mov_b32 %s, %s' % (vr(vTag), sr(sT)))

    def perm(u, e, r, dst):
        sel = sPo if (e & 1) else sPe
        hi = vdst(8 * u + 2 * r + 1) + (e >> 1)
        lo = vdst(8 * u + 2 * r) + (e >> 1)
        p('v_perm_b32 %s, %s, %s, %s' % (vr(dst), vr(hi), vr(lo), sr(sel)))

    def mf(u, e, a):
        src = '0' if (u == 0 and e < 4) else vr(ACC + 4 * (e & 3), 4)
        p('v_mfma_f32_16x16x32_bf16 %s, %s, %s, %s' % (vr(ACC + 4 * (e & 3), 4), vr(a, 4), vr(BL(u) if e < 4 else BH(u), 4), src))

    def pv(u):
        sets = [AT, AT + 4, AT + 8]
        for r in range(4):
            perm(u, 0, r, sets[0] + r)
        for e in range(8):
            if e + 1 < 8:
                for r in range(4):
                    perm(u, e + 1, r, sets[(e + 1) % 3] + r)
            mf(u, e, sets[e % 3])

    for u in range(3):
        vm.wait(vidx[8 * u + 7])
        pv(u)
    A3 = VA
    for r in range(4):
        vm.wait(vidx[24 + 2 * r + 1])
        if r == 3:
            stamp('vend')
        if r < 3:
            for e in range(8):
                perm(3, e, r, A3 + 4 * e + r)
    perm(3, 0, 3, A3 + 3)
    perm(3, 1, 3, A3 + 7)
    for e in range(8):
        if e + 2 < 8:
            perm(3, e + 2, 3, A3 + 4 * (e + 2) + 3)
        mf(3, e, A3 + 4 * e)
        if e >= 6:
            pass
    for e in range(4):
        p('ds_write_b128 %s, %s offset:%d' % (vr(vLw), vr(ACC + 4 * e, 4), e * 64))
    p('s_waitcnt lgkmcnt(0)')
    p('s_barrier')
    stamp('bar2')
    R, F = S, L
    p('ds_read_b128 %s, %s' % (vr(F, 4), vr(vFr)))
    for w in range(4):
        p('ds_read_b128 %s, %s offset:%d' % (vr(R + 4 * w, 4), vr(vLr), w * 4224))
    for w in range(4):
        p('s_waitcnt lgkmcnt(%d)' % (3 - w))
        fp = vr(F + (w & 2), 2)
        o = w & 1
        for hh in range(2):
            src = vr(R + 4 * w + 2 * hh, 2)
            dst = vr(R + 2 * hh, 2)
            if w == 0:
                p('v_pk_mul_f32 %s, %s, %s op_sel:[0,%d] op_sel_hi:[1,%d]' % (dst, src, fp, o, o))
            else:
                p('v_pk_fma_f32 %s, %s, %s, %s op_sel:[0,%d,0] op_sel_hi:[1,%d,1]' % (dst, src, fp, dst, o, o))
    for r in range(4):
        p('v_perm_b32 %s, %s, %s, %s' % (vr(R + r), vr(R + r), vr(vTag), sr(sTb + r)))
    p('buffer_store_dwordx4 %s, %s, %s, %s offen sc1' % (vr(R, 4), vr(vPub), sr(sWS, 4), sr(sB2)))
    stamp('pub')
    dump_stamps()
    p('s_endpgm')

    p('L_CTRL:')
    if opt.cprio:
        p('s_setprio %d' % opt.cprio)
    for r, off in ((sKT, 24), (sVT, 32), (sMK, 40), (sOUT, 48)):
        p('s_load_dwordx2 %s, s[0:1], %d' % (sr(r, 2), off))
    for r, size in ((sKT, 8192), (sVT, 8192), (sMK, 16), (sOUT, 65536)):
        srd(r, size)
    vH, vJ = 2, 3
    p('v_mov_b32 v8, -1')
    p('v_lshlrev_b32 v5, 2, v1')
    p('v_add_u32 v5, %d, v5' % LDS_STAT)
    p('ds_write_b32 v5, v8')
    p('v_lshrrev_b32 %s, 5, v1' % vr(vH))
    p('v_and_b32 %s, 31, v1' % vr(vJ))
    p('s_lshl_b32 %s, %s, 7' % (sr(sOk), sr(sG)))
    p('s_add_u32 %s, %s, 0x%x' % (sr(sOk), sr(sOk), EPOCH))
    p('s_mul_i32 %s, %s, %d' % (sr(sA), sr(sG), 8 * INBOX))
    p('s_lshl_b32 s4, %s, 4' % sr(sS))
    p('s_add_u32 %s, %s, s4' % (sr(sA), sr(sA)))
    p('s_add_u32 %s, %s, 4096' % (sr(sA), sr(sA)))
    p('s_waitcnt lgkmcnt(0)')
    stamp('karg')
    p('s_buffer_load_dword %s, %s, %s' % (sr(sE), sr(sWS, 4), sr(sOk)))
    if opt.bar0:
        p('s_barrier')
    TQ, TK, TM, VT0, VT1, vOutOff = 12, 13, 14, 15, 16, 17
    vT = 20
    vIn, vSt, vSa, vFa = 22, 23, 24, 25
    cm = VM(p)

    p('v_and_b32 v5, 3, %s' % vr(vJ))
    p('v_lshlrev_b32 v5, 1, v5')
    p('v_add_u32 v5, v5, %s' % vr(vH))
    p('v_lshrrev_b32 v18, 2, %s' % vr(vJ))
    p('v_lshl_add_u32 v5, v5, 4, v18')
    p('v_lshlrev_b32 %s, 1, v5' % vr(vOutOff))
    p('v_lshlrev_b32 v19, 2, v1')
    p('v_mov_b32 v18, 0')
    tidx = []

    def tree_loads():
        p('s_lshl_b32 s4, s2, 8')
        cm.issue('buffer_load_dword %s, v19, %s, s4 offen' % (vr(TQ), sr(sQ, 4)))
        p('s_lshl_b32 s5, %s, 8' % sr(sG))
        cm.issue('buffer_load_dword %s, v19, %s, s5 offen' % (vr(TK), sr(sKT, 4)))
        p('s_lshr_b32 s4, %s, 2' % sr(sG))
        p('s_lshl_b32 s4, s4, 1')
        cm.issue('buffer_load_ushort %s, v18, %s, s4 offen' % (vr(TM), sr(sMK, 4)))
        cm.issue('buffer_load_ushort %s, %s, %s, s5 offen' % (vr(VT0), vr(vOutOff), sr(sVT, 4)))
        tidx.append(cm.issue('buffer_load_ushort %s, %s, %s, s5 offen offset:16' % (vr(VT1), vr(vOutOff), sr(sVT, 4))))

    def tree_score():
        p('v_lshlrev_b32 v5, 16, %s' % vr(TQ))
        p('v_and_b32 %s, 0xffff0000, %s' % (vr(TQ), vr(TQ)))
        p('v_lshlrev_b32 v6, 16, %s' % vr(TK))
        p('v_and_b32 %s, 0xffff0000, %s' % (vr(TK), vr(TK)))
        p('v_mul_f32 v5, v5, v6')
        p('v_fmac_f32 v5, %s, %s' % (vr(TQ), vr(TK)))
        p('v_add_f32_dpp v5, v5, v5 row_shr:1 row_mask:0xf bank_mask:0xf bound_ctrl:0')
        p('v_add_f32_dpp v5, v5, v5 row_shr:2 row_mask:0xf bank_mask:0xf bound_ctrl:0')
        p('v_add_f32_dpp v5, v5, v5 row_shr:4 row_mask:0xf bank_mask:0xf bound_ctrl:0')
        p('v_add_f32_dpp v5, v5, v5 row_shr:8 row_mask:0xf bank_mask:0xf bound_ctrl:0')
        p('v_add_f32_dpp v5, v5, v5 row_bcast:15 row_mask:0xa bank_mask:0xf')
        p('v_add_f32_dpp v5, v5, v5 row_bcast:31 row_mask:0xc bank_mask:0xf')
        p('v_lshlrev_b32 %s, 16, %s' % (vr(TM), vr(TM)))
        p('v_sub_f32 %s, 1.0, %s' % (vr(TM), vr(TM)))
        p('v_mul_f32 %s, 0x%08x, %s' % (vr(TM), f2u(-1.0e9 * math.log2(math.e)), vr(TM)))
        p('v_readlane_b32 s4, v5, 63')
        p('v_lshlrev_b32 %s, 16, %s' % (vr(VT0), vr(VT0)))
        p('v_lshlrev_b32 %s, 16, %s' % (vr(VT1), vr(VT1)))
        p('v_mov_b32 v5, s4')
        p('v_mul_f32 v5, %s, v5' % sr(sC))
        p('v_add_f32 %s, v5, %s' % (vr(vT), vr(TM)))

    p('s_mov_b32 %s, 0x%08x' % (sr(sC), f2u(C)))
    if opt.treepos == 'front':
        tree_loads()
    p('v_lshlrev_b32 v6, 4, %s' % vr(vJ))
    p('v_lshl_add_u32 %s, %s, 11, v6' % (vr(vIn), vr(vH)))
    p('v_lshl_add_u32 v6, %s, 2, v1' % vr(vH))
    p('v_and_b32 v6, 7, v6')
    p('v_lshlrev_b32 v6, 4, v6')
    p('v_add_u32 %s, 4096, v6' % vr(vSt))
    p('v_lshlrev_b32 v6, 3, %s' % vr(vJ))
    p('v_add_u32 %s, %d, v6' % (vr(vSa), LDS_STAT))
    p('v_lshlrev_b32 v6, 2, %s' % vr(vJ))
    p('v_add_u32 %s, %d, v6' % (vr(vFa), LDS_F))
    p('v_lshrrev_b32 v6, 2, %s' % vr(vJ))
    p('v_mul_u32_u24 v7, %d, v6' % INBOX)
    p('s_mul_i32 %s, s2, %d' % (sr(sB2), INBOX))
    p('s_mov_b32 %s, 0' % sr(sHi))
    p('s_mov_b32 %s, -1' % sr(sHi + 1))
    stamp('cflag')
    W = 28
    p('s_mov_b32 %s, 0x40000' % sr(sCap))
    p('L_SPIN:')
    p('ds_read_b64 %s, %s' % (vr(W, 2), vr(vSa)))
    p('s_waitcnt lgkmcnt(0)')
    p('v_max_u32 v6, %s, %s' % (vr(W), vr(W + 1)))
    p('v_cmp_eq_u32 vcc, -1, v6')
    p('s_cbranch_vccz L_GOT')
    p('s_sleep %d' % opt.spinsleep)
    p('s_sub_u32 %s, %s, 1' % (sr(sCap), sr(sCap)))
    p('s_cbranch_scc0 L_SPIN')
    p('L_GOT:')
    stamp('cstat')
    Mg, fw = 32, 30
    p('s_add_u32 %s, %s, 1' % (sr(sT), sr(sE)))
    p('v_max_f32_dpp %s, %s, %s quad_perm:[1,0,3,2] row_mask:0xf bank_mask:0xf' % (vr(Mg), vr(W), vr(W)))
    p('v_mov_b32 %s, %s' % (vr(Mg + 2), sr(sT)))
    p('v_max_f32_dpp %s, %s, %s quad_perm:[2,3,0,1] row_mask:0xf bank_mask:0xf' % (vr(Mg), vr(Mg), vr(Mg)))
    p('v_not_b32 %s, %s' % (vr(Mg + 3), vr(Mg + 2)))
    p('v_sub_f32 %s, %s, %s' % (vr(fw), vr(W), vr(Mg)))
    p('v_exp_f32 %s, %s' % (vr(fw), vr(fw)))
    p('v_mul_f32 %s, %s, %s' % (vr(Mg + 1), vr(fw), vr(W + 1)))
    p('ds_write_b32 %s, %s' % (vr(vFa), vr(fw)))
    p('v_add_f32_dpp %s, %s, %s quad_perm:[1,0,3,2] row_mask:0xf bank_mask:0xf' % (vr(Mg + 1), vr(Mg + 1), vr(Mg + 1)))
    p('v_add_f32_dpp %s, %s, %s quad_perm:[2,3,0,1] row_mask:0xf bank_mask:0xf' % (vr(Mg + 1), vr(Mg + 1), vr(Mg + 1)))
    for k in range(4):
        p('s_bfe_u32 %s, %s, 0x%x' % (sr(sTb + k), sr(sT), (8 << 16) | (8 * k)))

    def statpub():
        p('s_mov_b64 exec, 0x11111111')
        cm.issue('buffer_store_dwordx4 %s, v7, %s, %s offen sc1' % (vr(Mg, 4), sr(sWS, 4), sr(sA)))
        p('s_mov_b64 exec, -1')

    ST = 36
    sidx = []

    def statld():
        sidx[:] = [cm.issue('buffer_load_dwordx4 %s, %s, %s, %s offen sc1' % (vr(ST, 4), vr(vSt), sr(sWS, 4), sr(sB2)))]

    if opt.middelay:
        p('s_sleep %d' % opt.middelay)
    if opt.statpos == 'early':
        statpub()
    if opt.treepos == 'mid':
        tree_loads()
    if opt.touchout:
        p('s_lshl_b32 s4, s2, 8')
        cm.issue('buffer_load_dword v63, v19, %s, s4 offen' % sr(sOUT, 4))
    if opt.statld == 'mid':
        assert opt.statpos == 'early'
        statld()
    p('s_waitcnt lgkmcnt(0)')
    stamp('cpub')
    p('s_barrier')
    if opt.statpos != 'early':
        statpub()
    if opt.statld != 'mid':
        statld()
    stamp('bar2')
    D = 40

    def dloads(base=D):
        r = None
        for i in range(4):
            r = cm.issue('buffer_load_dwordx4 %s, %s, %s, %s offen offset:%d sc1' % (vr(base + 4 * i, 4), vr(vIn), sr(sWS, 4), sr(sB2), i * 512))
        return r

    dloads()
    if opt.treepos == 'late':
        tree_loads()
    p('s_mov_b32 %s, 0x10000' % sr(sCap))
    if opt.treepos in ('front', 'mid'):
        cm.wait(tidx[0])
        tree_score()
    cm.wait(sidx[0])
    p('L_STAT:')
    p('v_xor_b32 v6, %s, %s' % (vr(ST + 2), vr(Mg + 2)))
    p('v_xor_b32 v5, %s, %s' % (vr(ST + 3), vr(Mg + 3)))
    p('v_or_b32 v6, v5, v6')
    p('v_cmp_ne_u32 vcc, 0, v6')
    p('s_cbranch_vccz L_STATOK')
    p('s_sub_u32 %s, %s, 1' % (sr(sCap), sr(sCap)))
    p('s_cbranch_scc1 L_STATOK')
    if opt.pollsleep:
        p('s_sleep %d' % opt.pollsleep)
    p('buffer_load_dwordx4 %s, %s, %s, %s offen sc1' % (vr(ST, 4), vr(vSt), sr(sWS, 4), sr(sB2)))
    p('s_waitcnt vmcnt(0)')
    p('s_branch L_STAT')
    p('L_STATOK:')
    stamp('sready')
    if opt.treepos == 'late':
        p('s_waitcnt vmcnt(0)')
        tree_score()
    Mx, f, ft, fl, rr = 56, 57, 58, 59, 60
    p('v_max_f32_dpp %s, %s, %s quad_perm:[1,0,3,2] row_mask:0xf bank_mask:0xf' % (vr(Mx), vr(ST), vr(ST)))
    p('v_max_f32_dpp %s, %s, %s quad_perm:[2,3,0,1] row_mask:0xf bank_mask:0xf' % (vr(Mx), vr(Mx), vr(Mx)))
    p('v_max_f32_dpp %s, %s, %s row_half_mirror row_mask:0xf bank_mask:0xf' % (vr(Mx), vr(Mx), vr(Mx)))
    p('v_max_f32 %s, %s, %s' % (vr(Mx), vr(Mx), vr(vT)))
    p('v_sub_f32 %s, %s, %s' % (vr(f), vr(ST), vr(Mx)))
    p('v_sub_f32 %s, %s, %s' % (vr(ft), vr(vT), vr(Mx)))
    p('v_exp_f32 %s, %s' % (vr(f), vr(f)))
    p('v_exp_f32 %s, %s' % (vr(ft), vr(ft)))
    p('v_mul_f32 %s, %s, %s' % (vr(fl), vr(f), vr(ST + 1)))
    p('v_add_f32_dpp %s, %s, %s quad_perm:[1,0,3,2] row_mask:0xf bank_mask:0xf' % (vr(fl), vr(fl), vr(fl)))
    p('v_add_f32_dpp %s, %s, %s quad_perm:[2,3,0,1] row_mask:0xf bank_mask:0xf' % (vr(fl), vr(fl), vr(fl)))
    p('v_add_f32_dpp %s, %s, %s row_half_mirror row_mask:0xf bank_mask:0xf' % (vr(fl), vr(fl), vr(fl)))
    p('v_add_f32 %s, %s, %s' % (vr(fl), vr(fl), vr(ft)))
    p('v_rcp_f32 %s, %s' % (vr(rr), vr(fl)))
    p('v_mul_f32 %s, %s, %s' % (vr(f), vr(f), vr(rr)))
    p('v_mul_f32 %s, %s, %s' % (vr(ft), vr(ft), vr(rr)))
    A = 64
    p('v_mul_f32 v5, %s, %s' % (vr(ft), vr(VT0)))
    p('v_mul_f32 v6, %s, %s' % (vr(ft), vr(VT1)))
    p('v_cndmask_b32 %s, v5, 0, %s' % (vr(A), sr(sHi, 2)))
    p('v_cndmask_b32 %s, v6, 0, %s' % (vr(A + 1), sr(sHi, 2)))
    p('v_cndmask_b32 %s, 0, v5, %s' % (vr(A + 2), sr(sHi, 2)))
    p('v_cndmask_b32 %s, 0, v6, %s' % (vr(A + 3), sr(sHi, 2)))
    p('s_mov_b32 %s, 0x10000' % sr(sCap))
    mx = 61

    def dcheck(base):
        for i in range(4):
            for k in range(4):
                p('v_xor_b32 %s, %s, %s' % (vr(base + 4 * i + k), sr(sTb + k), vr(base + 4 * i + k)))
            if i == 0:
                p('v_or3_b32 %s, %s, %s, %s' % (vr(mx), vr(base), vr(base + 1), vr(base + 2)))
                p('v_mov_b32 %s, %s' % (vr(mx + 1), vr(base + 3))) if False else None
            elif i == 1:
                p('v_or3_b32 %s, %s, %s, %s' % (vr(mx + 1), vr(base + 3), vr(base + 4), vr(base + 5)))
                p('v_or3_b32 %s, %s, %s, %s' % (vr(mx), vr(mx), vr(base + 6), vr(base + 7)))
            elif i == 2:
                p('v_or3_b32 %s, %s, %s, %s' % (vr(mx + 1), vr(mx + 1), vr(base + 8), vr(base + 9)))
                p('v_or3_b32 %s, %s, %s, %s' % (vr(mx), vr(mx), vr(base + 10), vr(base + 11)))
            else:
                p('v_or3_b32 %s, %s, %s, %s' % (vr(mx + 1), vr(mx + 1), vr(base + 12), vr(base + 13)))
                p('v_or3_b32 %s, %s, %s, %s' % (vr(mx), vr(mx), vr(base + 14), vr(base + 15)))
        p('v_or_b32 %s, %s, %s' % (vr(mx), vr(mx), vr(mx + 1)))
        p('v_and_b32 %s, 0xff, %s' % (vr(mx), vr(mx)))
        p('v_cmp_ne_u32 vcc, 0, %s' % vr(mx))

    def finish(base):
        stamp('dready')
        for i in range(4):
            for k in range(4):
                p('v_fmac_f32_dpp %s, %s, %s row_newbcast:%d row_mask:0xf bank_mask:0xf' % (vr(A + k), vr(f), vr(base + 4 * i + k), i))
        p('v_permlane32_swap_b32 %s, %s' % (vr(A), vr(A + 2)))
        p('v_permlane32_swap_b32 %s, %s' % (vr(A + 1), vr(A + 3)))
        p('v_add_f32 %s, %s, %s' % (vr(A), vr(A), vr(A + 2)))
        p('v_add_f32 %s, %s, %s' % (vr(A + 1), vr(A + 1), vr(A + 3)))
        p('v_cvt_pk_bf16_f32 %s, %s, %s' % (vr(A), vr(A), vr(A + 1)))
        p('s_lshl_b32 s4, s2, 8')
        osc = {0: '', 1: ' sc1', 2: ' sc0 sc1', 3: ' nt'}[opt.outsc]
        p('buffer_store_short %s, %s, %s, s4 offen%s' % (vr(A), vr(vOutOff), sr(sOUT, 4), osc))
        p('buffer_store_short_d16_hi %s, %s, %s, s4 offen offset:16%s' % (vr(A), vr(vOutOff), sr(sOUT, 4), osc))
        p('s_cmp_lg_u32 %s, 0' % sr(sS))
        p('s_cbranch_scc1 L_DONE')
        p('v_mov_b32 v5, %s' % sr(sOk))
        p('s_mov_b64 exec, 1')
        p('buffer_store_dword %s, v5, %s, 0 offen' % (vr(Mg + 2), sr(sWS, 4)))
        p('s_mov_b64 exec, -1')
        p('s_branch L_DONE') if False else None

    p('s_waitcnt vmcnt(0)')
    p('L_POLL:')
    dcheck(D)
    p('s_cbranch_vccz L_READY')
    p('s_sub_u32 %s, %s, 1' % (sr(sCap), sr(sCap)))
    p('s_cbranch_scc1 L_READY')
    if opt.pollsleep:
        p('s_sleep %d' % opt.pollsleep)
    dloads()
    p('s_waitcnt vmcnt(0)')
    p('s_branch L_POLL')
    p('L_READY:')
    finish(D)
    p('L_DONE:')
    stamp('end')
    dump_stamps()
    p('L_END:')
    p('s_endpgm')
    body = p.text(verbose=opt.verbose)
    out = HEADER
    out += '; Override launch geometry by editing the next line (default: block=256,\n'
    out += '; grid=ceil(out_elems/256), lds=0). Harness parses it; keep it on one line.\n'
    out += '; @launch grid=(256,1,1) block=(320,1,1) lds=%d\n' % LDS_SIZE
    out += '.amdgcn_target "amdgcn-amd-amdhsa--gfx950"\n.text\n.globl %s_kernel\n.p2align 8\n.type %s_kernel,@function\n%s_kernel:\n' % (NAME, NAME, NAME)
    out += body
    out += '.section .rodata,"a"\n.p2align 6\n.amdhsa_kernel %s_kernel\n' % NAME
    out += '  .amdhsa_next_free_vgpr 232\n  .amdhsa_next_free_sgpr %d\n  .amdhsa_accum_offset 232\n' % (102 if opt.prof else 72)
    out += '  .amdhsa_group_segment_fixed_size 0\n  .amdhsa_kernarg_size 72\n  .amdhsa_user_sgpr_count 2\n'
    out += '  .amdhsa_user_sgpr_kernarg_segment_ptr 1\n  .amdhsa_system_sgpr_workgroup_id_x 1\n.end_amdhsa_kernel\n'
    return out


if __name__ == '__main__':
    ap = argparse.ArgumentParser()
    ap.add_argument('-o', default='v3.s')
    ap.add_argument('--bar0', type=int, default=2)
    ap.add_argument('--qpos', type=int, default=2)
    ap.add_argument('--vlead', type=int, default=2)
    ap.add_argument('--vstep', type=int, default=2)
    ap.add_argument('--spinsleep', type=int, default=2)
    ap.add_argument('--cprio', type=int, default=3)
    ap.add_argument('--pollsleep', type=int, default=0)
    ap.add_argument('--treepos', default='mid')
    ap.add_argument('--statpos', default='early')
    ap.add_argument('--statld', default='mid')
    ap.add_argument('--statafter', type=int, default=1)
    ap.add_argument('--touchout', type=int, default=0)
    ap.add_argument('--middelay', type=int, default=0)
    ap.add_argument('--outsc', type=int, default=0)
    ap.add_argument('--epos', type=int, default=0)
    ap.add_argument('--map', default='')
    ap.add_argument('--verbose', action='store_true')
    ap.add_argument('--prof', action='store_true')
    opt = ap.parse_args()
    open(opt.o, 'w').write(gen(opt))
    print('wrote', opt.o)
```

```python
import sys, struct, math, argparse
from asmlib import Prog

NAME = 'standalone__tree_speculative_verify_tree_attention_over_candidate_token_tree__decode'
HEADER = open('cdna_kernels/%s.s.ref' % NAME).read().split('; Override launch')[0]


def f2u(x):
    return struct.unpack('<I', struct.pack('<f', x))[0]


def vr(a, n=1):
    return 'v%d' % a if n == 1 else 'v[%d:%d]' % (a, a + n - 1)


def sr(a, n=1):
    return 's%d' % a if n == 1 else 's[%d:%d]' % (a, a + n - 1)


INBOX = 4224
EPOCH = 256 * INBOX
STAMPS = ['entry', 'karg', 'kiss', 'K0', 'K7', 'sm', 'viss', 'vend', 'bar2', 'pub',
          'cflag', 'cstat', 'cpub', 'sready', 'dready', 'end']

LDS_STAT = 131072
LDS_F = LDS_STAT + 256
LDS_O = LDS_STAT + 512
LDS_SIZE = LDS_O + 4 * 4224


class VM:
    def __init__(self, p):
        self.p = p
        self.n = 0

    win = 0
    gran = 4
    done = -1

    def issue(self, text):
        if self.win and self.n % self.gran == 0 and self.n + self.gran > self.win:
            need = self.n + self.gran - self.win - 1
            if need > self.done:
                self.wait(need)
        self.p(text)
        self.n += 1
        return self.n - 1

    def wait(self, idx):
        k = self.n - 1 - idx
        assert 0 <= k <= 63, k
        self.done = max(self.done, idx)
        self.p('s_waitcnt vmcnt(%d)' % k)


def gen(opt):
    p = Prog()
    sK, sV, sQ, sWS, sOUT, sDBG, sKT, sVT, sMK = 8, 12, 16, 20, 24, 28, 32, 36, 40
    sBT = 44
    sC, sPe, sPo = 52, 53, 54
    sLW = 55
    sHi = 56
    sG, sS, sCap, sA, sB2, sOk = 58, 59, 60, 61, 62, 63
    sE, sT, sTb = 64, 65, 66
    C = math.log2(math.e) / math.sqrt(128.0)

    def stamp(name):
        if opt.prof:
            i = STAMPS.index(name)
            p('s_memrealtime s[%d:%d]' % (70 + 2 * i, 71 + 2 * i))

    def dump_stamps(vtmp=(5, 6)):
        if opt.prof:
            a, b = vtmp
            p('s_waitcnt lgkmcnt(0)')
            p('v_mov_b32 v%d, 0' % b)
            for i in range(16):
                p('v_writelane_b32 v%d, s%d, %d' % (b, 70 + 2 * i, i))
            p('s_lshl_b32 s4, s2, 3')
            p('s_add_u32 s4, s4, s3')
            p('s_lshl_b32 s4, s4, 6')
            p('s_add_u32 s4, s4, 0x8000000')
            p('v_lshlrev_b32 v%d, 2, v1' % a)
            p('s_mov_b64 exec, 0xffff')
            p('buffer_store_dword v%d, v%d, %s, s4 offen' % (b, a, sr(sWS, 4)))
            p('s_mov_b64 exec, -1')

    def srd(r, size):
        p('s_mov_b32 %s, 0x%x' % (sr(r + 2), size))
        p('s_mov_b32 %s, 0x20000' % sr(r + 3))

    p('s_cmp_ge_u32 s2, 256')
    p('s_cbranch_scc1 L_END')
    if opt.prof:
        for i in range(16):
            p('s_mov_b32 s%d, 0' % (70 + 2 * i))
    stamp('entry')
    if opt.map == 'xcd':
        p('s_and_b32 s4, s2, 7')
        p('s_lshl_b32 s4, s4, 5')
        p('s_bfe_u32 s5, s2, 0x20003')
        p('s_lshl_b32 s5, s5, 3')
        p('s_lshr_b32 s2, s2, 5')
        p('s_or_b32 s2, s2, s4')
        p('s_or_b32 s2, s2, s5')
    elif opt.map == 'xcd2':
        p('s_and_b32 s4, s2, 7')
        p('s_lshl_b32 s4, s4, 5')
        p('s_lshr_b32 s2, s2, 3')
        p('s_or_b32 s2, s2, s4')
    for r, off in ((sK, 8), (sV, 16), (sQ, 0), (sWS, 64)):
        p('s_load_dwordx2 %s, s[0:1], %d' % (sr(r, 2), off))
    p('v_lshrrev_b32 v5, 6, v0')
    p('v_and_b32 v1, 63, v0')
    p('v_readfirstlane_b32 s3, v5')
    srd(sK, 0x2000000)
    srd(sV, 0x2000000)
    srd(sQ, 65536)
    srd(sWS, 0x10000000)
    p('s_lshr_b32 %s, s2, 3' % sr(sG))
    p('s_and_b32 %s, s2, 7' % sr(sS))
    p('s_cmp_eq_u32 s3, 4')
    p('s_cbranch_scc1 L_CTRL')

    vK, vV, vQ = 2, 6, 7
    vRd = 8
    vLw, vLr, vFr, vPub = 12, 13, 14, 15
    S, ACC, L, ONES, T0 = 16, 32, 48, 52, 56
    B, AT, VA, VB = 60, 92, 104, 168
    QL, QH, KF = VB, VB + 16, VB + 32
    vm = VM(p)
    vm.win = opt.win
    vm.gran = opt.gran
    p('v_and_b32 v8, 15, v1')
    p('v_lshrrev_b32 v9, 4, v1')
    p('v_lshlrev_b32 v10, 2, v9')
    p('v_xor_b32 v10, v8, v10')
    p('v_lshlrev_b32 v11, 8, v9')
    p('v_lshl_or_b32 %s, v10, 4, v11' % vr(vK))
    for i in range(1, 4):
        p('v_xor_b32 %s, %d, %s' % (vr(vK + i), 16 * i, vr(vK)))
    p('s_lshl_b32 %s, s3, 15' % sr(sLW))
    if opt.tmap == 'w8':
        p('s_lshl_b32 s4, s2, 17')
        p('s_add_u32 s4, s4, %s' % sr(sLW))
        lstride = 12
    elif opt.tmap == 'il':
        p('s_lshl_b32 s4, s2, 17')
        p('s_lshl_b32 s5, s3, 12')
        p('s_add_u32 s4, s4, s5')
        lstride = 14
    elif opt.tmap == 'gil':
        p('s_lshl_b32 s4, %s, 20' % sr(sG))
        p('s_lshl_b32 s5, %s, 14' % sr(sS))
        p('s_add_u32 s4, s4, s5')
        p('s_lshl_b32 s5, s3, 12')
        p('s_add_u32 s4, s4, s5')
        lstride = 17
    elif opt.tmap == 'gil2':
        p('s_lshl_b32 s4, %s, 20' % sr(sG))
        p('s_lshl_b32 s5, %s, 12' % sr(sS))
        p('s_add_u32 s4, s4, s5')
        p('s_lshl_b32 s5, s3, 15')
        p('s_add_u32 s4, s4, s5')
        lstride = 17
    if opt.rot == 'none':
        p('s_mov_b32 %s, s4' % sr(sBT))
        for T in range(1, 8):
            p('s_add_u32 %s, s4, %d' % (sr(sBT + T), T << lstride))
    else:
        if opt.rot == 'w':
            p('s_lshl_b32 s5, s3, 1')
        elif opt.rot == 'wg':
            p('s_mov_b32 s5, %s' % sr(sS))
        elif opt.rot == 'g':
            p('s_mov_b32 s5, %s' % sr(sG))
        elif opt.rot == 'wwg':
            p('s_lshl_b32 s5, s3, 1')
            p('s_add_u32 s5, s5, %s' % sr(sS))
            p('s_add_u32 s5, s5, %s' % sr(sG))
        elif opt.rot == 'hash':
            p('s_lshl_b32 s5, s2, 2')
            p('s_add_u32 s5, s5, s3')
            p('s_mul_i32 s5, s5, 0x9E3779B1')
            p('s_lshr_b32 s5, s5, 29')
        for T in range(8):
            p('s_add_u32 s6, s5, %d' % T)
            p('s_and_b32 s6, s6, 7')
            p('s_lshl_b32 s6, s6, %d' % lstride)
            p('s_add_u32 %s, s4, s6' % sr(sBT + T))
    p('v_lshlrev_b32 %s, 4, v1' % vr(vV))
    p('s_lshl_b32 %s, %s, 7' % (sr(sOk), sr(sG)))
    p('s_add_u32 %s, %s, 0x%x' % (sr(sOk), sr(sOk), EPOCH))
    p('s_waitcnt lgkmcnt(0)')
    stamp('karg')
    if opt.epos == 0:
        p('s_buffer_load_dword %s, %s, %s' % (sr(sE), sr(sWS, 4), sr(sOk)))
    kidx = {}
    qidx = []

    def issue_q():
        for sl in range(4):
            qidx.append(vm.issue('buffer_load_dwordx4 %s, %s, %s, %s offen offset:%d' % (vr(QL + 4 * sl, 4), vr(vQ), sr(sQ, 4), sr(sA), sl * 64)))

    def setup_q():
        p('v_and_b32 v56, 7, v1')
        p('v_lshrrev_b32 v57, 4, v1')
        p('v_lshlrev_b32 v57, 4, v57')
        p('v_lshl_or_b32 %s, v56, 8, v57' % vr(vQ))
        p('s_lshl_b32 %s, %s, 11' % (sr(sA), sr(sG)))

    for T in range(8):
        p('s_add_u32 m0, %s, %d' % (sr(sLW), T * 4096))
        for i in range(4):
            kidx[(T, i)] = vm.issue('buffer_load_dwordx4 %s, %s, %s offen offset:%d lds' % (vr(vK + i), sr(sK, 4), sr(sBT + T), i * 1024))
        if T == opt.bar0 - 1:
            p('s_barrier')
        if T == opt.qpos - 1:
            setup_q()
            issue_q()
    stamp('kiss')
    if opt.epos == 1:
        p('s_buffer_load_dword %s, %s, %s' % (sr(sE), sr(sWS, 4), sr(sOk)))
    vidx = {}

    def vdst(j):
        return (VA + 4 * j) if j < 16 else (VB + 4 * (j - 16))

    def issue_v(j):
        vidx[j] = vm.issue('buffer_load_dwordx4 %s, %s, %s, %s offen offset:%d' % (vr(vdst(j), 4), vr(vV), sr(sV, 4), sr(sBT + (j >> 2)), (j & 3) * 1024))

    nv = [0]

    def issue_v_upto(n):
        while nv[0] < min(n, 16):
            issue_v(nv[0]); nv[0] += 1

    issue_v_upto(opt.vlead)
    p('s_mov_b32 %s, 0x%08x' % (sr(sC), f2u(C)))
    p('s_mov_b32 %s, 0x05040100' % sr(sPe))
    p('s_mov_b32 %s, 0x07060302' % sr(sPo))
    p('s_mov_b32 %s, 0xff00ff00' % sr(sHi))
    p('s_mov_b32 %s, 0xff00ff00' % sr(sHi + 1))
    for r in range(4):
        p('v_mov_b32 %s, 0x3f803f80' % vr(ONES + r))
    for r in range(32):
        p('v_mov_b32 %s, 0' % vr(B + r))
    p('v_and_b32 v56, 3, v1')
    p('v_bfe_u32 v57, v1, 2, 2')
    p('v_lshl_or_b32 v56, v56, 2, v57')
    p('v_and_b32 v57, 15, v1')
    p('v_lshrrev_b32 v58, 4, v1')
    p('v_xor_b32 v57, v57, v58')
    p('v_lshlrev_b32 v57, 4, v57')
    p('v_lshl_or_b32 v56, v56, 8, v57')
    p('v_add_u32 %s, %s, v56' % (vr(vRd), sr(sLW)))
    for sl in range(1, 4):
        p('v_xor_b32 %s, %d, %s' % (vr(vRd + sl), sl * 64, vr(vRd)))
    p('v_and_b32 v56, 7, v1')
    p('v_mul_u32_u24 v56, 528, v56')
    p('v_bfe_u32 v57, v1, 3, 1')
    p('v_lshl_add_u32 v56, v57, 8, v56')
    p('v_lshl_add_u32 v56, v58, 4, v56')
    p('s_mul_i32 s4, s3, 4224')
    p('s_add_u32 s4, s4, %d' % LDS_O)
    p('v_add_u32 %s, s4, v56' % vr(vLw))
    p('v_lshrrev_b32 v56, 5, v1')
    p('v_and_b32 v57, 31, v1')
    p('v_lshlrev_b32 v57, 4, v57')
    p('v_mul_u32_u24 v58, 528, v56')
    p('v_add_u32 v58, v58, v57')
    p('s_mul_i32 s4, s3, 1056')
    p('s_add_u32 s4, s4, %d' % LDS_O)
    p('v_add_u32 %s, s4, v58' % vr(vLr))
    p('s_lshl_b32 s4, s3, 5')
    p('s_add_u32 s4, s4, %d' % LDS_F)
    p('v_lshlrev_b32 v58, 4, v56')
    p('v_add_u32 %s, s4, v58' % vr(vFr))
    p('v_mul_u32_u24 v58, %d, v56' % INBOX)
    p('v_add_u32 %s, v58, v57' % vr(vPub))
    p('s_lshl_b32 s4, %s, 3' % sr(sG))
    p('s_lshl_b32 s5, s3, 1')
    p('s_add_u32 s4, s4, s5')
    p('s_mul_i32 s4, s4, %d' % INBOX)
    p('s_lshl_b32 s5, %s, 9' % sr(sS))
    p('s_add_u32 %s, s4, s5' % sr(sB2))
    for T in range(8):
        last = kidx[(T, 3)]
        if T == 0:
            last = max(last, qidx[-1])
        vm.wait(last)
        if T == 0:
            stamp('K0')
        if T == 7:
            stamp('K7')
        fs = KF + 16 * (T & 1)
        for sl in range(4):
            p('ds_read_b128 %s, %s offset:%d' % (vr(fs + 4 * sl, 4), vr(vRd + sl), T * 4096))
        if T == 0:
            for k in range(16):
                p('v_cndmask_b32 %s, 0, %s, %s' % (vr(QH + k), vr(QL + k), sr(sHi, 2)))
            for k in range(16):
                p('v_cndmask_b32 %s, %s, 0, %s' % (vr(QL + k), vr(QL + k), sr(sHi, 2)))
        issue_v_upto(opt.vlead + opt.vstep * (T + 1))

        def qk(T):
            fs = KF + 16 * (T & 1)
            q = QH if (T & 1) else QL
            acc = S + 4 * (T >> 1)
            for sl in range(4):
                src = '0' if (sl == 0 and not (T & 1)) else vr(acc, 4)
                p('v_mfma_f32_16x16x32_bf16 %s, %s, %s, %s' % (vr(acc, 4), vr(fs + 4 * sl, 4), vr(q + 4 * sl, 4), src))
        if T > 0:
            p('s_waitcnt lgkmcnt(4)')
            qk(T - 1)
    issue_v_upto(16)
    p('s_waitcnt lgkmcnt(0)')
    qk(7)
    m, t = T0, T0 + 1
    p('v_max3_f32 %s, %s, %s, %s' % (vr(m), vr(S), vr(S + 1), vr(S + 2)))
    p('v_max3_f32 %s, %s, %s, %s' % (vr(t), vr(S + 3), vr(S + 4), vr(S + 5)))
    p('v_max3_f32 %s, %s, %s, %s' % (vr(m), vr(m), vr(S + 6), vr(S + 7)))
    p('v_max3_f32 %s, %s, %s, %s' % (vr(t), vr(t), vr(S + 8), vr(S + 9)))
    p('v_max3_f32 %s, %s, %s, %s' % (vr(m), vr(m), vr(S + 10), vr(S + 11)))
    p('v_max3_f32 %s, %s, %s, %s' % (vr(t), vr(t), vr(S + 12), vr(S + 13)))
    p('v_max3_f32 %s, %s, %s, %s' % (vr(m), vr(m), vr(S + 14), vr(S + 15)))
    p('v_max_f32 %s, %s, %s' % (vr(m), vr(m), vr(t)))
    p('v_max_f32_dpp %s, %s, %s row_ror:8 row_mask:0xf bank_mask:0xf' % (vr(m), vr(m), vr(m)))
    p('v_mov_b32 %s, %s' % (vr(t), vr(m)))
    p('v_permlane16_swap_b32 %s, %s' % (vr(m), vr(t)))
    p('v_max_f32 %s, %s, %s' % (vr(m), vr(m), vr(t)))
    p('v_mov_b32 %s, %s' % (vr(t), vr(m)))
    p('v_permlane32_swap_b32 %s, %s' % (vr(m), vr(t)))
    p('v_max_f32 %s, %s, %s' % (vr(m), vr(m), vr(t)))
    vMc = T0 + 2
    p('v_mul_f32 %s, %s, %s' % (vr(vMc), sr(sC), vr(m)))
    for k in range(16):
        p('v_fma_f32 %s, %s, %s, -%s' % (vr(S + k), vr(S + k), sr(sC), vr(vMc)))
    for k in range(16):
        p('v_exp_f32 %s, %s' % (vr(S + k), vr(S + k)))
    BL = lambda u: B + 8 * u
    BH = lambda u: B + 8 * u + 4
    p('s_mov_b64 exec, 0x00ff00ff00ff00ff') if False else None
    p('s_not_b64 exec, %s' % sr(sHi, 2))
    for u in range(4):
        p('v_cvt_pk_bf16_f32 %s, %s, %s' % (vr(BL(u)), vr(S + 4 * u), vr(S + 4 * u + 1)))
        p('v_cvt_pk_bf16_f32 %s, %s, %s' % (vr(BL(u) + 1), vr(S + 4 * u + 2), vr(S + 4 * u + 3)))
    p('s_mov_b64 exec, %s' % sr(sHi, 2))
    for u in range(4):
        p('v_cvt_pk_bf16_f32 %s, %s, %s' % (vr(BH(u) + 2), vr(S + 4 * u), vr(S + 4 * u + 1)))
        p('v_cvt_pk_bf16_f32 %s, %s, %s' % (vr(BH(u) + 3), vr(S + 4 * u + 2), vr(S + 4 * u + 3)))
    p('s_mov_b64 exec, -1')
    for u in range(4):
        p('v_mov_b32_dpp %s, %s row_ror:8 row_mask:0xf bank_mask:0x3' % (vr(BL(u) + 2), vr(BH(u) + 2)))
        p('v_mov_b32_dpp %s, %s row_ror:8 row_mask:0xf bank_mask:0x3' % (vr(BL(u) + 3), vr(BH(u) + 3)))
    for u in range(4):
        p('v_mov_b32_dpp %s, %s row_ror:8 row_mask:0xf bank_mask:0xc' % (vr(BH(u)), vr(BL(u))))
        p('v_mov_b32_dpp %s, %s row_ror:8 row_mask:0xf bank_mask:0xc' % (vr(BH(u) + 1), vr(BL(u) + 1)))
    for u in range(4):
        p('v_mfma_f32_16x16x32_bf16 %s, %s, %s, %s' % (vr(L, 4), vr(ONES, 4), vr(BL(u), 4), '0' if u == 0 else vr(L, 4)))
    def statw():
        p('v_lshlrev_b32 %s, 5, v1' % vr(t))
        p('s_lshl_b32 s4, s3, 3')
        p('s_add_u32 s4, s4, %d' % LDS_STAT)
        p('v_add_u32 %s, s4, %s' % (vr(t), vr(t)))
        p('v_min_u32 %s, -2, %s' % (vr(vMc), vr(vMc)))
        p('v_min_u32 %s, -2, %s' % (vr(vMc + 1), vr(L)))
        p('s_mov_b64 exec, 0xff')
        p('ds_write_b64 %s, %s' % (vr(t), vr(vMc, 2)))
        p('s_mov_b64 exec, -1')
    if not opt.statafter:
        statw()
    stamp('sm')
    for j in range(16, 32):
        issue_v(j)
    if opt.statafter:
        statw()
    stamp('viss')
    vTag = T0
    p('s_add_u32 %s, %s, 1' % (sr(sT), sr(sE)))
    for k in range(4):
        p('s_mov_b32 %s, 0x%08x' % (sr(sTb + k), 0x07060500 | k))
    p('v_mov_b32 %s, %s' % (vr(vTag), sr(sT)))

    def perm(u, e, r, dst):
        sel = sPo if (e & 1) else sPe
        hi = vdst(8 * u + 2 * r + 1) + (e >> 1)
        lo = vdst(8 * u + 2 * r) + (e >> 1)
        p('v_perm_b32 %s, %s, %s, %s' % (vr(dst), vr(hi), vr(lo), sr(sel)))

    def mf(u, e, a):
        src = '0' if (u == 0 and e < 4) else vr(ACC + 4 * (e & 3), 4)
        p('v_mfma_f32_16x16x32_bf16 %s, %s, %s, %s' % (vr(ACC + 4 * (e & 3), 4), vr(a, 4), vr(BL(u) if e < 4 else BH(u), 4), src))

    def pv(u):
        sets = [AT, AT + 4, AT + 8]
        for r in range(4):
            perm(u, 0, r, sets[0] + r)
        for e in range(8):
            if e + 1 < 8:
                for r in range(4):
                    perm(u, e + 1, r, sets[(e + 1) % 3] + r)
            mf(u, e, sets[e % 3])

    for u in range(3):
        vm.wait(vidx[8 * u + 7])
        pv(u)
    A3 = VA
    for r in range(4):
        vm.wait(vidx[24 + 2 * r + 1])
        if r == 3:
            stamp('vend')
        if r < 3:
            for e in range(8):
                perm(3, e, r, A3 + 4 * e + r)
    perm(3, 0, 3, A3 + 3)
    perm(3, 1, 3, A3 + 7)
    for e in range(8):
        if e + 2 < 8:
            perm(3, e + 2, 3, A3 + 4 * (e + 2) + 3)
        mf(3, e, A3 + 4 * e)
        if e >= 6:
            pass
    for e in range(4):
        p('ds_write_b128 %s, %s offset:%d' % (vr(vLw), vr(ACC + 4 * e, 4), e * 64))
    p('s_waitcnt lgkmcnt(0)')
    p('s_barrier')
    stamp('bar2')
    R, F = S, L
    p('ds_read_b128 %s, %s' % (vr(F, 4), vr(vFr)))
    for w in range(4):
        p('ds_read_b128 %s, %s offset:%d' % (vr(R + 4 * w, 4), vr(vLr), w * 4224))
    for w in range(4):
        p('s_waitcnt lgkmcnt(%d)' % (3 - w))
        fp = vr(F + (w & 2), 2)
        o = w & 1
        for hh in range(2):
            src = vr(R + 4 * w + 2 * hh, 2)
            dst = vr(R + 2 * hh, 2)
            if w == 0:
                p('v_pk_mul_f32 %s, %s, %s op_sel:[0,%d] op_sel_hi:[1,%d]' % (dst, src, fp, o, o))
            else:
                p('v_pk_fma_f32 %s, %s, %s, %s op_sel:[0,%d,0] op_sel_hi:[1,%d,1]' % (dst, src, fp, dst, o, o))
    for r in range(4):
        p('v_perm_b32 %s, %s, %s, %s' % (vr(R + r), vr(R + r), vr(vTag), sr(sTb + r)))
    p('buffer_store_dwordx4 %s, %s, %s, %s offen sc1' % (vr(R, 4), vr(vPub), sr(sWS, 4), sr(sB2)))
    stamp('pub')
    dump_stamps()
    p('s_endpgm')

    p('L_CTRL:')
    if opt.cprio:
        p('s_setprio %d' % opt.cprio)
    for r, off in ((sKT, 24), (sVT, 32), (sMK, 40), (sOUT, 48)):
        p('s_load_dwordx2 %s, s[0:1], %d' % (sr(r, 2), off))
    for r, size in ((sKT, 8192), (sVT, 8192), (sMK, 16), (sOUT, 65536)):
        srd(r, size)
    vH, vJ = 2, 3
    p('v_mov_b32 v8, -1')
    p('v_lshlrev_b32 v5, 2, v1')
    p('v_add_u32 v5, %d, v5' % LDS_STAT)
    p('ds_write_b32 v5, v8')
    p('v_lshrrev_b32 %s, 5, v1' % vr(vH))
    p('v_and_b32 %s, 31, v1' % vr(vJ))
    p('s_lshl_b32 %s, %s, 7' % (sr(sOk), sr(sG)))
    p('s_add_u32 %s, %s, 0x%x' % (sr(sOk), sr(sOk), EPOCH))
    p('s_mul_i32 %s, %s, %d' % (sr(sA), sr(sG), 8 * INBOX))
    p('s_lshl_b32 s4, %s, 4' % sr(sS))
    p('s_add_u32 %s, %s, s4' % (sr(sA), sr(sA)))
    p('s_add_u32 %s, %s, 4096' % (sr(sA), sr(sA)))
    p('s_waitcnt lgkmcnt(0)')
    stamp('karg')
    p('s_buffer_load_dword %s, %s, %s' % (sr(sE), sr(sWS, 4), sr(sOk)))
    if opt.bar0:
        p('s_barrier')
    TQ, TK, TM, VT0, VT1, vOutOff = 12, 13, 14, 15, 16, 17
    vT = 20
    vIn, vSt, vSa, vFa = 22, 23, 24, 25
    cm = VM(p)

    p('v_and_b32 v5, 3, %s' % vr(vJ))
    p('v_lshlrev_b32 v5, 1, v5')
    p('v_add_u32 v5, v5, %s' % vr(vH))
    p('v_lshrrev_b32 v18, 2, %s' % vr(vJ))
    p('v_lshl_add_u32 v5, v5, 4, v18')
    p('v_lshlrev_b32 %s, 1, v5' % vr(vOutOff))
    p('v_lshlrev_b32 v19, 2, v1')
    p('v_mov_b32 v18, 0')
    tidx = []

    def tree_loads():
        p('s_lshl_b32 s4, s2, 8')
        cm.issue('buffer_load_dword %s, v19, %s, s4 offen' % (vr(TQ), sr(sQ, 4)))
        p('s_lshl_b32 s5, %s, 8' % sr(sG))
        cm.issue('buffer_load_dword %s, v19, %s, s5 offen' % (vr(TK), sr(sKT, 4)))
        p('s_lshr_b32 s4, %s, 2' % sr(sG))
        p('s_lshl_b32 s4, s4, 1')
        cm.issue('buffer_load_ushort %s, v18, %s, s4 offen' % (vr(TM), sr(sMK, 4)))
        cm.issue('buffer_load_ushort %s, %s, %s, s5 offen' % (vr(VT0), vr(vOutOff), sr(sVT, 4)))
        tidx.append(cm.issue('buffer_load_ushort %s, %s, %s, s5 offen offset:16' % (vr(VT1), vr(vOutOff), sr(sVT, 4))))

    def tree_score():
        p('v_lshlrev_b32 v5, 16, %s' % vr(TQ))
        p('v_and_b32 %s, 0xffff0000, %s' % (vr(TQ), vr(TQ)))
        p('v_lshlrev_b32 v6, 16, %s' % vr(TK))
        p('v_and_b32 %s, 0xffff0000, %s' % (vr(TK), vr(TK)))
        p('v_mul_f32 v5, v5, v6')
        p('v_fmac_f32 v5, %s, %s' % (vr(TQ), vr(TK)))
        p('v_add_f32_dpp v5, v5, v5 row_shr:1 row_mask:0xf bank_mask:0xf bound_ctrl:0')
        p('v_add_f32_dpp v5, v5, v5 row_shr:2 row_mask:0xf bank_mask:0xf bound_ctrl:0')
        p('v_add_f32_dpp v5, v5, v5 row_shr:4 row_mask:0xf bank_mask:0xf bound_ctrl:0')
        p('v_add_f32_dpp v5, v5, v5 row_shr:8 row_mask:0xf bank_mask:0xf bound_ctrl:0')
        p('v_add_f32_dpp v5, v5, v5 row_bcast:15 row_mask:0xa bank_mask:0xf')
        p('v_add_f32_dpp v5, v5, v5 row_bcast:31 row_mask:0xc bank_mask:0xf')
        p('v_lshlrev_b32 %s, 16, %s' % (vr(TM), vr(TM)))
        p('v_sub_f32 %s, 1.0, %s' % (vr(TM), vr(TM)))
        p('v_mul_f32 %s, 0x%08x, %s' % (vr(TM), f2u(-1.0e9 * math.log2(math.e)), vr(TM)))
        p('v_readlane_b32 s4, v5, 63')
        p('v_lshlrev_b32 %s, 16, %s' % (vr(VT0), vr(VT0)))
        p('v_lshlrev_b32 %s, 16, %s' % (vr(VT1), vr(VT1)))
        p('v_mov_b32 v5, s4')
        p('v_mul_f32 v5, %s, v5' % sr(sC))
        p('v_add_f32 %s, v5, %s' % (vr(vT), vr(TM)))

    p('s_mov_b32 %s, 0x%08x' % (sr(sC), f2u(C)))
    if opt.treepos == 'front':
        tree_loads()
    p('v_lshlrev_b32 v6, 4, %s' % vr(vJ))
    p('v_lshl_add_u32 %s, %s, 11, v6' % (vr(vIn), vr(vH)))
    p('v_lshl_add_u32 v6, %s, 2, v1' % vr(vH))
    p('v_and_b32 v6, 7, v6')
    p('v_lshlrev_b32 v6, 4, v6')
    p('v_add_u32 %s, 4096, v6' % vr(vSt))
    p('v_lshlrev_b32 v6, 3, %s' % vr(vJ))
    p('v_add_u32 %s, %d, v6' % (vr(vSa), LDS_STAT))
    p('v_lshlrev_b32 v6, 2, %s' % vr(vJ))
    p('v_add_u32 %s, %d, v6' % (vr(vFa), LDS_F))
    p('v_lshrrev_b32 v6, 2, %s' % vr(vJ))
    p('v_mul_u32_u24 v7, %d, v6' % INBOX)
    p('s_mul_i32 %s, s2, %d' % (sr(sB2), INBOX))
    p('s_mov_b32 %s, 0' % sr(sHi))
    p('s_mov_b32 %s, -1' % sr(sHi + 1))
    stamp('cflag')
    W = 28
    p('s_mov_b32 %s, 0x40000' % sr(sCap))
    p('L_SPIN:')
    p('ds_read_b64 %s, %s' % (vr(W, 2), vr(vSa)))
    p('s_waitcnt lgkmcnt(0)')
    p('v_max_u32 v6, %s, %s' % (vr(W), vr(W + 1)))
    p('v_cmp_eq_u32 vcc, -1, v6')
    p('s_cbranch_vccz L_GOT')
    p('s_sleep %d' % opt.spinsleep)
    p('s_sub_u32 %s, %s, 1' % (sr(sCap), sr(sCap)))
    p('s_cbranch_scc0 L_SPIN')
    p('L_GOT:')
    stamp('cstat')
    Mg, fw = 32, 30
    p('s_add_u32 %s, %s, 1' % (sr(sT), sr(sE)))
    p('v_max_f32_dpp %s, %s, %s quad_perm:[1,0,3,2] row_mask:0xf bank_mask:0xf' % (vr(Mg), vr(W), vr(W)))
    p('v_mov_b32 %s, %s' % (vr(Mg + 2), sr(sT)))
    p('v_max_f32_dpp %s, %s, %s quad_perm:[2,3,0,1] row_mask:0xf bank_mask:0xf' % (vr(Mg), vr(Mg), vr(Mg)))
    p('v_not_b32 %s, %s' % (vr(Mg + 3), vr(Mg + 2)))
    p('v_sub_f32 %s, %s, %s' % (vr(fw), vr(W), vr(Mg)))
    p('v_exp_f32 %s, %s' % (vr(fw), vr(fw)))
    p('v_mul_f32 %s, %s, %s' % (vr(Mg + 1), vr(fw), vr(W + 1)))
    p('ds_write_b32 %s, %s' % (vr(vFa), vr(fw)))
    p('v_add_f32_dpp %s, %s, %s quad_perm:[1,0,3,2] row_mask:0xf bank_mask:0xf' % (vr(Mg + 1), vr(Mg + 1), vr(Mg + 1)))
    p('v_add_f32_dpp %s, %s, %s quad_perm:[2,3,0,1] row_mask:0xf bank_mask:0xf' % (vr(Mg + 1), vr(Mg + 1), vr(Mg + 1)))
    for k in range(4):
        p('s_bfe_u32 %s, %s, 0x%x' % (sr(sTb + k), sr(sT), (8 << 16) | (8 * k)))

    def statpub():
        p('s_mov_b64 exec, 0x11111111')
        cm.issue('buffer_store_dwordx4 %s, v7, %s, %s offen sc1' % (vr(Mg, 4), sr(sWS, 4), sr(sA)))
        p('s_mov_b64 exec, -1')

    ST = 36
    sidx = []

    def statld():
        sidx[:] = [cm.issue('buffer_load_dwordx4 %s, %s, %s, %s offen sc1' % (vr(ST, 4), vr(vSt), sr(sWS, 4), sr(sB2)))]

    if opt.middelay:
        p('s_sleep %d' % opt.middelay)
    if opt.statpos == 'early':
        statpub()
    if opt.treepos == 'mid':
        tree_loads()
    if opt.touchout:
        p('s_lshl_b32 s4, s2, 8')
        cm.issue('buffer_load_dword v63, v19, %s, s4 offen' % sr(sOUT, 4))
    if opt.statld == 'mid':
        assert opt.statpos == 'early'
        statld()
    p('s_waitcnt lgkmcnt(0)')
    stamp('cpub')
    p('s_barrier')
    if opt.statpos != 'early':
        statpub()
    if opt.statld != 'mid':
        statld()
    stamp('bar2')
    D = 40

    def dloads(base=D):
        r = None
        for i in range(4):
            r = cm.issue('buffer_load_dwordx4 %s, %s, %s, %s offen offset:%d sc1' % (vr(base + 4 * i, 4), vr(vIn), sr(sWS, 4), sr(sB2), i * 512))
        return r

    dloads()
    if opt.treepos == 'late':
        tree_loads()
    p('s_mov_b32 %s, 0x10000' % sr(sCap))
    if opt.treepos in ('front', 'mid'):
        cm.wait(tidx[0])
        tree_score()
    cm.wait(sidx[0])
    p('L_STAT:')
    p('v_xor_b32 v6, %s, %s' % (vr(ST + 2), vr(Mg + 2)))
    p('v_xor_b32 v5, %s, %s' % (vr(ST + 3), vr(Mg + 3)))
    p('v_or_b32 v6, v5, v6')
    p('v_cmp_ne_u32 vcc, 0, v6')
    p('s_cbranch_vccz L_STATOK')
    p('s_sub_u32 %s, %s, 1' % (sr(sCap), sr(sCap)))
    p('s_cbranch_scc1 L_STATOK')
    if opt.pollsleep:
        p('s_sleep %d' % opt.pollsleep)
    p('buffer_load_dwordx4 %s, %s, %s, %s offen sc1' % (vr(ST, 4), vr(vSt), sr(sWS, 4), sr(sB2)))
    p('s_waitcnt vmcnt(0)')
    p('s_branch L_STAT')
    p('L_STATOK:')
    stamp('sready')
    if opt.treepos == 'late':
        p('s_waitcnt vmcnt(0)')
        tree_score()
    Mx, f, ft, fl, rr = 56, 57, 58, 59, 60
    p('v_max_f32_dpp %s, %s, %s quad_perm:[1,0,3,2] row_mask:0xf bank_mask:0xf' % (vr(Mx), vr(ST), vr(ST)))
    p('v_max_f32_dpp %s, %s, %s quad_perm:[2,3,0,1] row_mask:0xf bank_mask:0xf' % (vr(Mx), vr(Mx), vr(Mx)))
    p('v_max_f32_dpp %s, %s, %s row_half_mirror row_mask:0xf bank_mask:0xf' % (vr(Mx), vr(Mx), vr(Mx)))
    p('v_max_f32 %s, %s, %s' % (vr(Mx), vr(Mx), vr(vT)))
    p('v_sub_f32 %s, %s, %s' % (vr(f), vr(ST), vr(Mx)))
    p('v_sub_f32 %s, %s, %s' % (vr(ft), vr(vT), vr(Mx)))
    p('v_exp_f32 %s, %s' % (vr(f), vr(f)))
    p('v_exp_f32 %s, %s' % (vr(ft), vr(ft)))
    p('v_mul_f32 %s, %s, %s' % (vr(fl), vr(f), vr(ST + 1)))
    p('v_add_f32_dpp %s, %s, %s quad_perm:[1,0,3,2] row_mask:0xf bank_mask:0xf' % (vr(fl), vr(fl), vr(fl)))
    p('v_add_f32_dpp %s, %s, %s quad_perm:[2,3,0,1] row_mask:0xf bank_mask:0xf' % (vr(fl), vr(fl), vr(fl)))
    p('v_add_f32_dpp %s, %s, %s row_half_mirror row_mask:0xf bank_mask:0xf' % (vr(fl), vr(fl), vr(fl)))
    p('v_add_f32 %s, %s, %s' % (vr(fl), vr(fl), vr(ft)))
    p('v_rcp_f32 %s, %s' % (vr(rr), vr(fl)))
    p('v_mul_f32 %s, %s, %s' % (vr(f), vr(f), vr(rr)))
    p('v_mul_f32 %s, %s, %s' % (vr(ft), vr(ft), vr(rr)))
    A = 64
    p('v_mul_f32 v5, %s, %s' % (vr(ft), vr(VT0)))
    p('v_mul_f32 v6, %s, %s' % (vr(ft), vr(VT1)))
    p('v_cndmask_b32 %s, v5, 0, %s' % (vr(A), sr(sHi, 2)))
    p('v_cndmask_b32 %s, v6, 0, %s' % (vr(A + 1), sr(sHi, 2)))
    p('v_cndmask_b32 %s, 0, v5, %s' % (vr(A + 2), sr(sHi, 2)))
    p('v_cndmask_b32 %s, 0, v6, %s' % (vr(A + 3), sr(sHi, 2)))
    p('s_mov_b32 %s, 0x10000' % sr(sCap))
    mx = 61

    def dcheck(base):
        for i in range(4):
            for k in range(4):
                p('v_xor_b32 %s, %s, %s' % (vr(base + 4 * i + k), sr(sTb + k), vr(base + 4 * i + k)))
            if i == 0:
                p('v_or3_b32 %s, %s, %s, %s' % (vr(mx), vr(base), vr(base + 1), vr(base + 2)))
                p('v_mov_b32 %s, %s' % (vr(mx + 1), vr(base + 3))) if False else None
            elif i == 1:
                p('v_or3_b32 %s, %s, %s, %s' % (vr(mx + 1), vr(base + 3), vr(base + 4), vr(base + 5)))
                p('v_or3_b32 %s, %s, %s, %s' % (vr(mx), vr(mx), vr(base + 6), vr(base + 7)))
            elif i == 2:
                p('v_or3_b32 %s, %s, %s, %s' % (vr(mx + 1), vr(mx + 1), vr(base + 8), vr(base + 9)))
                p('v_or3_b32 %s, %s, %s, %s' % (vr(mx), vr(mx), vr(base + 10), vr(base + 11)))
            else:
                p('v_or3_b32 %s, %s, %s, %s' % (vr(mx + 1), vr(mx + 1), vr(base + 12), vr(base + 13)))
                p('v_or3_b32 %s, %s, %s, %s' % (vr(mx), vr(mx), vr(base + 14), vr(base + 15)))
        p('v_or_b32 %s, %s, %s' % (vr(mx), vr(mx), vr(mx + 1)))
        p('v_and_b32 %s, 0xff, %s' % (vr(mx), vr(mx)))
        p('v_cmp_ne_u32 vcc, 0, %s' % vr(mx))

    def finish(base):
        stamp('dready')
        for i in range(4):
            for k in range(4):
                p('v_fmac_f32_dpp %s, %s, %s row_newbcast:%d row_mask:0xf bank_mask:0xf' % (vr(A + k), vr(f), vr(base + 4 * i + k), i))
        p('v_permlane32_swap_b32 %s, %s' % (vr(A), vr(A + 2)))
        p('v_permlane32_swap_b32 %s, %s' % (vr(A + 1), vr(A + 3)))
        p('v_add_f32 %s, %s, %s' % (vr(A), vr(A), vr(A + 2)))
        p('v_add_f32 %s, %s, %s' % (vr(A + 1), vr(A + 1), vr(A + 3)))
        p('v_cvt_pk_bf16_f32 %s, %s, %s' % (vr(A), vr(A), vr(A + 1)))
        p('s_lshl_b32 s4, s2, 8')
        osc = {0: '', 1: ' sc1', 2: ' sc0 sc1', 3: ' nt'}[opt.outsc]
        p('buffer_store_short %s, %s, %s, s4 offen%s' % (vr(A), vr(vOutOff), sr(sOUT, 4), osc))
        p('buffer_store_short_d16_hi %s, %s, %s, s4 offen offset:16%s' % (vr(A), vr(vOutOff), sr(sOUT, 4), osc))
        p('s_cmp_lg_u32 %s, 0' % sr(sS))
        p('s_cbranch_scc1 L_DONE')
        p('v_mov_b32 v5, %s' % sr(sOk))
        p('s_mov_b64 exec, 1')
        p('buffer_store_dword %s, v5, %s, 0 offen' % (vr(Mg + 2), sr(sWS, 4)))
        p('s_mov_b64 exec, -1')
        p('s_branch L_DONE') if False else None

    p('s_waitcnt vmcnt(0)')
    p('L_POLL:')
    dcheck(D)
    p('s_cbranch_vccz L_READY')
    p('s_sub_u32 %s, %s, 1' % (sr(sCap), sr(sCap)))
    p('s_cbranch_scc1 L_READY')
    if opt.pollsleep:
        p('s_sleep %d' % opt.pollsleep)
    dloads()
    p('s_waitcnt vmcnt(0)')
    p('s_branch L_POLL')
    p('L_READY:')
    finish(D)
    p('L_DONE:')
    stamp('end')
    dump_stamps()
    p('L_END:')
    p('s_endpgm')
    body = p.text(verbose=opt.verbose)
    out = HEADER
    out += '; Override launch geometry by editing the next line (default: block=256,\n'
    out += '; grid=ceil(out_elems/256), lds=0). Harness parses it; keep it on one line.\n'
    out += '; @launch grid=(256,1,1) block=(320,1,1) lds=%d\n' % LDS_SIZE
    out += '.amdgcn_target "amdgcn-amd-amdhsa--gfx950"\n.text\n.globl %s_kernel\n.p2align 8\n.type %s_kernel,@function\n%s_kernel:\n' % (NAME, NAME, NAME)
    out += body
    out += '.section .rodata,"a"\n.p2align 6\n.amdhsa_kernel %s_kernel\n' % NAME
    out += '  .amdhsa_next_free_vgpr 232\n  .amdhsa_next_free_sgpr %d\n  .amdhsa_accum_offset 232\n' % (102 if opt.prof else 72)
    out += '  .amdhsa_group_segment_fixed_size 0\n  .amdhsa_kernarg_size 72\n  .amdhsa_user_sgpr_count 2\n'
    out += '  .amdhsa_user_sgpr_kernarg_segment_ptr 1\n  .amdhsa_system_sgpr_workgroup_id_x 1\n.end_amdhsa_kernel\n'
    return out


if __name__ == '__main__':
    ap = argparse.ArgumentParser()
    ap.add_argument('-o', default='v3.s')
    ap.add_argument('--bar0', type=int, default=2)
    ap.add_argument('--qpos', type=int, default=2)
    ap.add_argument('--vlead', type=int, default=2)
    ap.add_argument('--vstep', type=int, default=2)
    ap.add_argument('--spinsleep', type=int, default=2)
    ap.add_argument('--cprio', type=int, default=3)
    ap.add_argument('--pollsleep', type=int, default=0)
    ap.add_argument('--treepos', default='mid')
    ap.add_argument('--statpos', default='early')
    ap.add_argument('--statld', default='mid')
    ap.add_argument('--statafter', type=int, default=1)
    ap.add_argument('--touchout', type=int, default=0)
    ap.add_argument('--middelay', type=int, default=0)
    ap.add_argument('--outsc', type=int, default=0)
    ap.add_argument('--epos', type=int, default=0)
    ap.add_argument('--map', default='')
    ap.add_argument('--win', type=int, default=0)
    ap.add_argument('--gran', type=int, default=4)
    ap.add_argument('--tmap', default='w8')
    ap.add_argument('--rot', default='none')
    ap.add_argument('--verbose', action='store_true')
    ap.add_argument('--prof', action='store_true')
    opt = ap.parse_args()
    open(opt.o, 'w').write(gen(opt))
    print('wrote', opt.o)
```

```python
import sys, struct, math, argparse
from asmlib import Prog

NAME = 'standalone__tree_speculative_verify_tree_attention_over_candidate_token_tree__decode'
HEADER = open('cdna_kernels/%s.s.ref' % NAME).read().split('; Override launch')[0]


def f2u(x):
    return struct.unpack('<I', struct.pack('<f', x))[0]


def vr(a, n=1):
    return 'v%d' % a if n == 1 else 'v[%d:%d]' % (a, a + n - 1)


def sr(a, n=1):
    return 's%d' % a if n == 1 else 's[%d:%d]' % (a, a + n - 1)


INBOX = 4224
EPOCH = 256 * INBOX
AOFF = 0x10000
GST = 0x20000
STAMPS = ['entry', 'karg', 'kiss', 'K0', 'K7', 'sm', 'viss', 'vend', 'bar2', 'pub',
          'cflag', 'cstat', 'cpub', 'sready', 'dready', 'end']

LDS_STAT = 131072
LDS_F = LDS_STAT + 256
LDS_O = LDS_STAT + 512
LDS_SIZE = LDS_O + 4 * 4224


class VM:
    def __init__(self, p):
        self.p = p
        self.n = 0

    win = 0
    gran = 4
    done = -1

    def issue(self, text):
        if self.win and self.n % self.gran == 0 and self.n + self.gran > self.win:
            need = self.n + self.gran - self.win - 1
            if need > self.done:
                self.wait(need)
        self.p(text)
        self.n += 1
        return self.n - 1

    def wait(self, idx):
        k = self.n - 1 - idx
        assert 0 <= k <= 63, k
        self.done = max(self.done, idx)
        self.p('s_waitcnt vmcnt(%d)' % k)


def gen(opt):
    p = Prog()
    dual = opt.hand == 'dual'

    def epoch_addr(dst):
        if dual:
            p('s_lshl_b32 %s, %s, 17' % (dst, sr(sG)))
            p('s_add_u32 %s, %s, 0xC000' % (dst, dst))
        else:
            p('s_lshl_b32 %s, %s, 7' % (dst, sr(sG)))
            p('s_add_u32 %s, %s, 0x%x' % (dst, dst, EPOCH))
    sK, sV, sQ, sWS, sOUT, sDBG, sKT, sVT, sMK = 8, 12, 16, 20, 24, 28, 32, 36, 40
    sBT = 44
    sC, sPe, sPo = 52, 53, 54
    sLW = 55
    sHi = 56
    sG, sS, sCap, sA, sB2, sOk = 58, 59, 60, 61, 62, 63
    sE, sT, sTb = 64, 65, 66
    C = math.log2(math.e) / math.sqrt(128.0)

    def stamp(name):
        if opt.prof:
            i = STAMPS.index(name)
            p('s_memrealtime s[%d:%d]' % (70 + 2 * i, 71 + 2 * i))

    def dump_stamps(vtmp=(5, 6)):
        if opt.prof:
            a, b = vtmp
            p('s_waitcnt lgkmcnt(0)')
            p('v_mov_b32 v%d, 0' % b)
            for i in range(16):
                p('v_writelane_b32 v%d, s%d, %d' % (b, 70 + 2 * i, i))
            p('s_lshl_b32 s4, s2, 3')
            p('s_add_u32 s4, s4, s3')
            p('s_lshl_b32 s4, s4, 6')
            p('s_add_u32 s4, s4, 0x8000000')
            p('v_lshlrev_b32 v%d, 2, v1' % a)
            p('s_mov_b64 exec, 0xffff')
            p('buffer_store_dword v%d, v%d, %s, s4 offen' % (b, a, sr(sWS, 4)))
            p('s_mov_b64 exec, -1')

    def srd(r, size):
        p('s_mov_b32 %s, 0x%x' % (sr(r + 2), size))
        p('s_mov_b32 %s, 0x20000' % sr(r + 3))

    p('s_cmp_ge_u32 s2, 256')
    p('s_cbranch_scc1 L_END')
    if opt.prof:
        for i in range(16):
            p('s_mov_b32 s%d, 0' % (70 + 2 * i))
    stamp('entry')
    if opt.map == 'xcd':
        p('s_and_b32 s4, s2, 7')
        p('s_lshl_b32 s4, s4, 5')
        p('s_bfe_u32 s5, s2, 0x20003')
        p('s_lshl_b32 s5, s5, 3')
        p('s_lshr_b32 s2, s2, 5')
        p('s_or_b32 s2, s2, s4')
        p('s_or_b32 s2, s2, s5')
    elif opt.map == 'xcd2':
        p('s_and_b32 s4, s2, 7')
        p('s_lshl_b32 s4, s4, 5')
        p('s_lshr_b32 s2, s2, 3')
        p('s_or_b32 s2, s2, s4')
    for r, off in ((sK, 8), (sV, 16), (sQ, 0), (sWS, 64)):
        p('s_load_dwordx2 %s, s[0:1], %d' % (sr(r, 2), off))
    p('v_lshrrev_b32 v5, 6, v0')
    p('v_and_b32 v1, 63, v0')
    p('v_readfirstlane_b32 s3, v5')
    srd(sK, 0x2000000)
    srd(sV, 0x2000000)
    srd(sQ, 65536)
    srd(sWS, 0x10000000)
    p('s_lshr_b32 %s, s2, 3' % sr(sG))
    p('s_and_b32 %s, s2, 7' % sr(sS))
    p('s_cmp_eq_u32 s3, 4')
    p('s_cbranch_scc1 L_CTRL')

    vK, vV, vQ = 2, 6, 7
    vRd = 8
    vLw, vLr, vFr, vPub = 12, 13, 14, 15
    S, ACC, L, ONES, T0 = 16, 32, 48, 52, 56
    B, AT, VA, VB = 60, 92, 104, 168
    QL, QH, KF = VB, VB + 16, VB + 32
    vm = VM(p)
    vm.win = opt.win
    vm.gran = opt.gran
    p('v_and_b32 v8, 15, v1')
    p('v_lshrrev_b32 v9, 4, v1')
    p('v_lshlrev_b32 v10, 2, v9')
    p('v_xor_b32 v10, v8, v10')
    p('v_lshlrev_b32 v11, 8, v9')
    p('v_lshl_or_b32 %s, v10, 4, v11' % vr(vK))
    for i in range(1, 4):
        p('v_xor_b32 %s, %d, %s' % (vr(vK + i), 16 * i, vr(vK)))
    p('s_lshl_b32 %s, s3, 15' % sr(sLW))
    if opt.tmap == 'w8':
        p('s_lshl_b32 s4, s2, 17')
        p('s_add_u32 s4, s4, %s' % sr(sLW))
        lstride = 12
    elif opt.tmap == 'il':
        p('s_lshl_b32 s4, s2, 17')
        p('s_lshl_b32 s5, s3, 12')
        p('s_add_u32 s4, s4, s5')
        lstride = 14
    elif opt.tmap == 'gil':
        p('s_lshl_b32 s4, %s, 20' % sr(sG))
        p('s_lshl_b32 s5, %s, 14' % sr(sS))
        p('s_add_u32 s4, s4, s5')
        p('s_lshl_b32 s5, s3, 12')
        p('s_add_u32 s4, s4, s5')
        lstride = 17
    elif opt.tmap == 'gil2':
        p('s_lshl_b32 s4, %s, 20' % sr(sG))
        p('s_lshl_b32 s5, %s, 12' % sr(sS))
        p('s_add_u32 s4, s4, s5')
        p('s_lshl_b32 s5, s3, 15')
        p('s_add_u32 s4, s4, s5')
        lstride = 17
    if opt.rot == 'none':
        p('s_mov_b32 %s, s4' % sr(sBT))
        for T in range(1, 8):
            p('s_add_u32 %s, s4, %d' % (sr(sBT + T), T << lstride))
    else:
        if opt.rot == 'w':
            p('s_lshl_b32 s5, s3, 1')
        elif opt.rot == 'wg':
            p('s_mov_b32 s5, %s' % sr(sS))
        elif opt.rot == 'g':
            p('s_mov_b32 s5, %s' % sr(sG))
        elif opt.rot == 'wwg':
            p('s_lshl_b32 s5, s3, 1')
            p('s_add_u32 s5, s5, %s' % sr(sS))
            p('s_add_u32 s5, s5, %s' % sr(sG))
        elif opt.rot == 'hash':
            p('s_lshl_b32 s5, s2, 2')
            p('s_add_u32 s5, s5, s3')
            p('s_mul_i32 s5, s5, 0x9E3779B1')
            p('s_lshr_b32 s5, s5, 29')
        for T in range(8):
            p('s_add_u32 s6, s5, %d' % T)
            p('s_and_b32 s6, s6, 7')
            p('s_lshl_b32 s6, s6, %d' % lstride)
            p('s_add_u32 %s, s4, s6' % sr(sBT + T))
    p('v_lshlrev_b32 %s, 4, v1' % vr(vV))
    epoch_addr(sr(sOk))
    p('s_waitcnt lgkmcnt(0)')
    stamp('karg')
    if opt.epos == 0:
        p('s_buffer_load_dword %s, %s, %s' % (sr(sE), sr(sWS, 4), sr(sOk)))
    kidx = {}
    qidx = []

    def issue_q():
        for sl in range(4):
            qidx.append(vm.issue('buffer_load_dwordx4 %s, %s, %s, %s offen offset:%d' % (vr(QL + 4 * sl, 4), vr(vQ), sr(sQ, 4), sr(sA), sl * 64)))

    def setup_q():
        p('v_and_b32 v56, 7, v1')
        p('v_lshrrev_b32 v57, 4, v1')
        p('v_lshlrev_b32 v57, 4, v57')
        p('v_lshl_or_b32 %s, v56, 8, v57' % vr(vQ))
        p('s_lshl_b32 %s, %s, 11' % (sr(sA), sr(sG)))

    for T in range(8):
        p('s_add_u32 m0, %s, %d' % (sr(sLW), T * 4096))
        for i in range(4):
            kidx[(T, i)] = vm.issue('buffer_load_dwordx4 %s, %s, %s offen offset:%d lds' % (vr(vK + i), sr(sK, 4), sr(sBT + T), i * 1024))
        if T == opt.bar0 - 1:
            p('s_barrier')
        if T == opt.qpos - 1:
            setup_q()
            issue_q()
    stamp('kiss')
    if opt.epos == 1:
        p('s_buffer_load_dword %s, %s, %s' % (sr(sE), sr(sWS, 4), sr(sOk)))
    vidx = {}

    def vdst(j):
        return (VA + 4 * j) if j < 16 else (VB + 4 * (j - 16))

    def issue_v(j):
        vidx[j] = vm.issue('buffer_load_dwordx4 %s, %s, %s, %s offen offset:%d' % (vr(vdst(j), 4), vr(vV), sr(sV, 4), sr(sBT + (j >> 2)), (j & 3) * 1024))

    nv = [0]

    def issue_v_upto(n):
        while nv[0] < min(n, 16):
            issue_v(nv[0]); nv[0] += 1

    issue_v_upto(opt.vlead)
    p('s_mov_b32 %s, 0x%08x' % (sr(sC), f2u(C)))
    p('s_mov_b32 %s, 0x05040100' % sr(sPe))
    p('s_mov_b32 %s, 0x07060302' % sr(sPo))
    p('s_mov_b32 %s, 0xff00ff00' % sr(sHi))
    p('s_mov_b32 %s, 0xff00ff00' % sr(sHi + 1))
    for r in range(4):
        p('v_mov_b32 %s, 0x3f803f80' % vr(ONES + r))
    for r in range(32):
        p('v_mov_b32 %s, 0' % vr(B + r))
    p('v_and_b32 v56, 3, v1')
    p('v_bfe_u32 v57, v1, 2, 2')
    p('v_lshl_or_b32 v56, v56, 2, v57')
    p('v_and_b32 v57, 15, v1')
    p('v_lshrrev_b32 v58, 4, v1')
    p('v_xor_b32 v57, v57, v58')
    p('v_lshlrev_b32 v57, 4, v57')
    p('v_lshl_or_b32 v56, v56, 8, v57')
    p('v_add_u32 %s, %s, v56' % (vr(vRd), sr(sLW)))
    for sl in range(1, 4):
        p('v_xor_b32 %s, %d, %s' % (vr(vRd + sl), sl * 64, vr(vRd)))
    p('v_and_b32 v56, 7, v1')
    p('v_mul_u32_u24 v56, 528, v56')
    p('v_bfe_u32 v57, v1, 3, 1')
    p('v_lshl_add_u32 v56, v57, 8, v56')
    p('v_lshl_add_u32 v56, v58, 4, v56')
    p('s_mul_i32 s4, s3, 4224')
    p('s_add_u32 s4, s4, %d' % LDS_O)
    p('v_add_u32 %s, s4, v56' % vr(vLw))
    p('v_lshrrev_b32 v56, 5, v1')
    p('v_and_b32 v57, 31, v1')
    p('v_lshlrev_b32 v57, 4, v57')
    p('v_mul_u32_u24 v58, 528, v56')
    p('v_add_u32 v58, v58, v57')
    p('s_mul_i32 s4, s3, 1056')
    p('s_add_u32 s4, s4, %d' % LDS_O)
    p('v_add_u32 %s, s4, v58' % vr(vLr))
    p('s_lshl_b32 s4, s3, 5')
    p('s_add_u32 s4, s4, %d' % LDS_F)
    p('v_lshlrev_b32 v58, 4, v56')
    p('v_add_u32 %s, s4, v58' % vr(vFr))
    p('v_mul_u32_u24 v58, %d, v56' % INBOX)
    p('v_add_u32 %s, v58, v57' % vr(vPub))
    if dual:
        p('s_mul_i32 s4, s3, %d' % (2 * INBOX))
        p('s_lshl_b32 s5, %s, 17' % sr(sG))
        p('s_add_u32 s4, s4, s5')
    else:
        p('s_lshl_b32 s4, %s, 3' % sr(sG))
        p('s_lshl_b32 s5, s3, 1')
        p('s_add_u32 s4, s4, s5')
        p('s_mul_i32 s4, s4, %d' % INBOX)
    p('s_lshl_b32 s5, %s, 9' % sr(sS))
    p('s_add_u32 %s, s4, s5' % sr(sB2))
    if opt.hand == 'dual':
        p('s_add_u32 s7, %s, 0x%x' % (sr(sB2), AOFF))
        if opt.ptouch >= 0:
            p('v_mov_b32 v0, %d' % (LDS_F + 128))

    def pretouch():
        p('s_mov_b64 exec, 1')
        p('ds_write_b32 v0, v0')
        p('s_mov_b64 exec, -1')
    for T in range(8):
        last = kidx[(T, 3)]
        if T == 0:
            last = max(last, qidx[-1])
        vm.wait(last)
        if T == 0:
            stamp('K0')
        if T == 7:
            stamp('K7')
        fs = KF + 16 * (T & 1)
        if dual and T == opt.ptouch:
            pretouch()
        for sl in range(4):
            p('ds_read_b128 %s, %s offset:%d' % (vr(fs + 4 * sl, 4), vr(vRd + sl), T * 4096))
        if T == 0:
            for k in range(16):
                p('v_cndmask_b32 %s, 0, %s, %s' % (vr(QH + k), vr(QL + k), sr(sHi, 2)))
            for k in range(16):
                p('v_cndmask_b32 %s, %s, 0, %s' % (vr(QL + k), vr(QL + k), sr(sHi, 2)))
        issue_v_upto(opt.vlead + opt.vstep * (T + 1))

        def qk(T):
            fs = KF + 16 * (T & 1)
            q = QH if (T & 1) else QL
            acc = S + 4 * (T >> 1)
            for sl in range(4):
                src = '0' if (sl == 0 and not (T & 1)) else vr(acc, 4)
                p('v_mfma_f32_16x16x32_bf16 %s, %s, %s, %s' % (vr(acc, 4), vr(fs + 4 * sl, 4), vr(q + 4 * sl, 4), src))
        if T > 0:
            p('s_waitcnt lgkmcnt(4)')
            qk(T - 1)
    issue_v_upto(16)
    p('s_waitcnt lgkmcnt(0)')
    qk(7)
    m, t = T0, T0 + 1
    p('v_max3_f32 %s, %s, %s, %s' % (vr(m), vr(S), vr(S + 1), vr(S + 2)))
    p('v_max3_f32 %s, %s, %s, %s' % (vr(t), vr(S + 3), vr(S + 4), vr(S + 5)))
    p('v_max3_f32 %s, %s, %s, %s' % (vr(m), vr(m), vr(S + 6), vr(S + 7)))
    p('v_max3_f32 %s, %s, %s, %s' % (vr(t), vr(t), vr(S + 8), vr(S + 9)))
    p('v_max3_f32 %s, %s, %s, %s' % (vr(m), vr(m), vr(S + 10), vr(S + 11)))
    p('v_max3_f32 %s, %s, %s, %s' % (vr(t), vr(t), vr(S + 12), vr(S + 13)))
    p('v_max3_f32 %s, %s, %s, %s' % (vr(m), vr(m), vr(S + 14), vr(S + 15)))
    p('v_max_f32 %s, %s, %s' % (vr(m), vr(m), vr(t)))
    p('v_max_f32_dpp %s, %s, %s row_ror:8 row_mask:0xf bank_mask:0xf' % (vr(m), vr(m), vr(m)))
    p('v_mov_b32 %s, %s' % (vr(t), vr(m)))
    p('v_permlane16_swap_b32 %s, %s' % (vr(m), vr(t)))
    p('v_max_f32 %s, %s, %s' % (vr(m), vr(m), vr(t)))
    p('v_mov_b32 %s, %s' % (vr(t), vr(m)))
    p('v_permlane32_swap_b32 %s, %s' % (vr(m), vr(t)))
    p('v_max_f32 %s, %s, %s' % (vr(m), vr(m), vr(t)))
    vMc = T0 + 2
    p('v_mul_f32 %s, %s, %s' % (vr(vMc), sr(sC), vr(m)))
    for k in range(16):
        p('v_fma_f32 %s, %s, %s, -%s' % (vr(S + k), vr(S + k), sr(sC), vr(vMc)))
    for k in range(16):
        p('v_exp_f32 %s, %s' % (vr(S + k), vr(S + k)))
    BL = lambda u: B + 8 * u
    BH = lambda u: B + 8 * u + 4
    p('s_mov_b64 exec, 0x00ff00ff00ff00ff') if False else None
    p('s_not_b64 exec, %s' % sr(sHi, 2))
    for u in range(4):
        p('v_cvt_pk_bf16_f32 %s, %s, %s' % (vr(BL(u)), vr(S + 4 * u), vr(S + 4 * u + 1)))
        p('v_cvt_pk_bf16_f32 %s, %s, %s' % (vr(BL(u) + 1), vr(S + 4 * u + 2), vr(S + 4 * u + 3)))
    p('s_mov_b64 exec, %s' % sr(sHi, 2))
    for u in range(4):
        p('v_cvt_pk_bf16_f32 %s, %s, %s' % (vr(BH(u) + 2), vr(S + 4 * u), vr(S + 4 * u + 1)))
        p('v_cvt_pk_bf16_f32 %s, %s, %s' % (vr(BH(u) + 3), vr(S + 4 * u + 2), vr(S + 4 * u + 3)))
    p('s_mov_b64 exec, -1')
    for u in range(4):
        p('v_mov_b32_dpp %s, %s row_ror:8 row_mask:0xf bank_mask:0x3' % (vr(BL(u) + 2), vr(BH(u) + 2)))
        p('v_mov_b32_dpp %s, %s row_ror:8 row_mask:0xf bank_mask:0x3' % (vr(BL(u) + 3), vr(BH(u) + 3)))
    for u in range(4):
        p('v_mov_b32_dpp %s, %s row_ror:8 row_mask:0xf bank_mask:0xc' % (vr(BH(u)), vr(BL(u))))
        p('v_mov_b32_dpp %s, %s row_ror:8 row_mask:0xf bank_mask:0xc' % (vr(BH(u) + 1), vr(BL(u) + 1)))
    for u in range(4):
        p('v_mfma_f32_16x16x32_bf16 %s, %s, %s, %s' % (vr(L, 4), vr(ONES, 4), vr(BL(u), 4), '0' if u == 0 else vr(L, 4)))
    def statw():
        p('v_lshlrev_b32 %s, 5, v1' % vr(t))
        p('s_lshl_b32 s4, s3, 3')
        p('s_add_u32 s4, s4, %d' % LDS_STAT)
        p('v_add_u32 %s, s4, %s' % (vr(t), vr(t)))
        p('v_min_u32 %s, -2, %s' % (vr(vMc), vr(vMc)))
        p('v_min_u32 %s, -2, %s' % (vr(vMc + 1), vr(L)))
        p('s_mov_b64 exec, 0xff')
        p('ds_write_b64 %s, %s' % (vr(t), vr(vMc, 2)))
        p('s_mov_b64 exec, -1')
    if not opt.statafter:
        statw()
    stamp('sm')
    for j in range(16, 32):
        issue_v(j)
    if opt.statafter:
        statw()
    stamp('viss')
    vTag = T0
    p('s_add_u32 %s, %s, 1' % (sr(sT), sr(sE)))
    for k in range(4):
        p('s_mov_b32 %s, 0x%08x' % (sr(sTb + k), 0x07060500 | k))
    p('v_mov_b32 %s, %s' % (vr(vTag), sr(sT)))

    def perm(u, e, r, dst):
        sel = sPo if (e & 1) else sPe
        hi = vdst(8 * u + 2 * r + 1) + (e >> 1)
        lo = vdst(8 * u + 2 * r) + (e >> 1)
        p('v_perm_b32 %s, %s, %s, %s' % (vr(dst), vr(hi), vr(lo), sr(sel)))

    def mf(u, e, a):
        src = '0' if (u == 0 and e < 4) else vr(ACC + 4 * (e & 3), 4)
        p('v_mfma_f32_16x16x32_bf16 %s, %s, %s, %s' % (vr(ACC + 4 * (e & 3), 4), vr(a, 4), vr(BL(u) if e < 4 else BH(u), 4), src))

    def pv(u):
        sets = [AT, AT + 4, AT + 8]
        for r in range(4):
            perm(u, 0, r, sets[0] + r)
        for e in range(8):
            if e + 1 < 8:
                for r in range(4):
                    perm(u, e + 1, r, sets[(e + 1) % 3] + r)
            mf(u, e, sets[e % 3])

    for u in range(3):
        vm.wait(vidx[8 * u + 7])
        pv(u)
    A3 = VA
    for r in range(4):
        vm.wait(vidx[24 + 2 * r + 1])
        if r == 3:
            stamp('vend')
        if r < 3:
            for e in range(8):
                perm(3, e, r, A3 + 4 * e + r)
    perm(3, 0, 3, A3 + 3)
    perm(3, 1, 3, A3 + 7)
    for e in range(8):
        if e + 2 < 8:
            perm(3, e + 2, 3, A3 + 4 * (e + 2) + 3)
        mf(3, e, A3 + 4 * e)
        if e >= 6:
            pass
    for e in range(4):
        p('ds_write_b128 %s, %s offset:%d' % (vr(vLw), vr(ACC + 4 * e, 4), e * 64))
    p('s_waitcnt lgkmcnt(0)')
    p('s_barrier')
    stamp('bar2')
    R, F = S, L
    p('ds_read_b128 %s, %s' % (vr(F, 4), vr(vFr)))
    for w in range(4):
        p('ds_read_b128 %s, %s offset:%d' % (vr(R + 4 * w, 4), vr(vLr), w * 4224))
    for w in range(4):
        p('s_waitcnt lgkmcnt(%d)' % (3 - w))
        fp = vr(F + (w & 2), 2)
        o = w & 1
        for hh in range(2):
            src = vr(R + 4 * w + 2 * hh, 2)
            dst = vr(R + 2 * hh, 2)
            if w == 0:
                p('v_pk_mul_f32 %s, %s, %s op_sel:[0,%d] op_sel_hi:[1,%d]' % (dst, src, fp, o, o))
            else:
                p('v_pk_fma_f32 %s, %s, %s, %s op_sel:[0,%d,0] op_sel_hi:[1,%d,1]' % (dst, src, fp, dst, o, o))
    for r in range(4):
        p('v_perm_b32 %s, %s, %s, %s' % (vr(R + r), vr(R + r), vr(vTag), sr(sTb + r)))
    if opt.hand == 'dual':
        p('buffer_store_dwordx4 %s, %s, %s, s7 offen%s' % (vr(R, 4), vr(vPub), sr(sWS, 4), opt.aflag))
    p('buffer_store_dwordx4 %s, %s, %s, %s offen sc1' % (vr(R, 4), vr(vPub), sr(sWS, 4), sr(sB2)))
    stamp('pub')
    dump_stamps()
    p('s_endpgm')

    p('L_CTRL:')
    if opt.cprio:
        p('s_setprio %d' % opt.cprio)
    for r, off in ((sKT, 24), (sVT, 32), (sMK, 40), (sOUT, 48)):
        p('s_load_dwordx2 %s, s[0:1], %d' % (sr(r, 2), off))
    for r, size in ((sKT, 8192), (sVT, 8192), (sMK, 16), (sOUT, 65536)):
        srd(r, size)
    vH, vJ = 2, 3
    if opt.hand == 'dual':
        p('s_getreg_b32 s7, hwreg(HW_REG_XCC_ID, 0, 4)')
    p('v_mov_b32 v8, -1')
    p('v_lshlrev_b32 v5, 2, v1')
    p('v_add_u32 v5, %d, v5' % LDS_STAT)
    p('ds_write_b32 v5, v8')
    if dual and opt.ptouch >= 0:
        p('ds_write_b32 v5, v8 offset:256')
    p('v_lshrrev_b32 %s, 5, v1' % vr(vH))
    p('v_and_b32 %s, 31, v1' % vr(vJ))
    epoch_addr(sr(sOk))
    p('s_mul_i32 %s, %s, %d' % (sr(sA), sr(sG), GST if dual else 8 * INBOX))
    p('s_lshl_b32 s4, %s, 4' % sr(sS))
    p('s_add_u32 %s, %s, s4' % (sr(sA), sr(sA)))
    p('s_add_u32 %s, %s, 4096' % (sr(sA), sr(sA)))
    p('s_waitcnt lgkmcnt(0)')
    stamp('karg')
    p('s_buffer_load_dword %s, %s, %s' % (sr(sE), sr(sWS, 4), sr(sOk)))
    if opt.bar0:
        p('s_barrier')
    TQ, TK, TM, VT0, VT1, vOutOff = 12, 13, 14, 15, 16, 17
    vT = 20
    vIn, vSt, vSa, vFa = 22, 23, 24, 25
    cm = VM(p)

    p('v_and_b32 v5, 3, %s' % vr(vJ))
    p('v_lshlrev_b32 v5, 1, v5')
    p('v_add_u32 v5, v5, %s' % vr(vH))
    p('v_lshrrev_b32 v18, 2, %s' % vr(vJ))
    p('v_lshl_add_u32 v5, v5, 4, v18')
    p('v_lshlrev_b32 %s, 1, v5' % vr(vOutOff))
    p('v_lshlrev_b32 v19, 2, v1')
    p('v_mov_b32 v18, 0')
    tidx = []

    def tree_loads():
        p('s_lshl_b32 s4, s2, 8')
        cm.issue('buffer_load_dword %s, v19, %s, s4 offen' % (vr(TQ), sr(sQ, 4)))
        p('s_lshl_b32 s5, %s, 8' % sr(sG))
        cm.issue('buffer_load_dword %s, v19, %s, s5 offen' % (vr(TK), sr(sKT, 4)))
        p('s_lshr_b32 s4, %s, 2' % sr(sG))
        p('s_lshl_b32 s4, s4, 1')
        cm.issue('buffer_load_ushort %s, v18, %s, s4 offen' % (vr(TM), sr(sMK, 4)))
        cm.issue('buffer_load_ushort %s, %s, %s, s5 offen' % (vr(VT0), vr(vOutOff), sr(sVT, 4)))
        tidx.append(cm.issue('buffer_load_ushort %s, %s, %s, s5 offen offset:16' % (vr(VT1), vr(vOutOff), sr(sVT, 4))))

    def tree_score():
        p('v_lshlrev_b32 v5, 16, %s' % vr(TQ))
        p('v_and_b32 %s, 0xffff0000, %s' % (vr(TQ), vr(TQ)))
        p('v_lshlrev_b32 v6, 16, %s' % vr(TK))
        p('v_and_b32 %s, 0xffff0000, %s' % (vr(TK), vr(TK)))
        p('v_mul_f32 v5, v5, v6')
        p('v_fmac_f32 v5, %s, %s' % (vr(TQ), vr(TK)))
        p('v_add_f32_dpp v5, v5, v5 row_shr:1 row_mask:0xf bank_mask:0xf bound_ctrl:0')
        p('v_add_f32_dpp v5, v5, v5 row_shr:2 row_mask:0xf bank_mask:0xf bound_ctrl:0')
        p('v_add_f32_dpp v5, v5, v5 row_shr:4 row_mask:0xf bank_mask:0xf bound_ctrl:0')
        p('v_add_f32_dpp v5, v5, v5 row_shr:8 row_mask:0xf bank_mask:0xf bound_ctrl:0')
        p('v_add_f32_dpp v5, v5, v5 row_bcast:15 row_mask:0xa bank_mask:0xf')
        p('v_add_f32_dpp v5, v5, v5 row_bcast:31 row_mask:0xc bank_mask:0xf')
        p('v_lshlrev_b32 %s, 16, %s' % (vr(TM), vr(TM)))
        p('v_sub_f32 %s, 1.0, %s' % (vr(TM), vr(TM)))
        p('v_mul_f32 %s, 0x%08x, %s' % (vr(TM), f2u(-1.0e9 * math.log2(math.e)), vr(TM)))
        p('v_readlane_b32 s4, v5, 63')
        p('v_lshlrev_b32 %s, 16, %s' % (vr(VT0), vr(VT0)))
        p('v_lshlrev_b32 %s, 16, %s' % (vr(VT1), vr(VT1)))
        p('v_mov_b32 v5, s4')
        p('v_mul_f32 v5, %s, v5' % sr(sC))
        p('v_add_f32 %s, v5, %s' % (vr(vT), vr(TM)))

    p('s_mov_b32 %s, 0x%08x' % (sr(sC), f2u(C)))
    if opt.treepos == 'front':
        tree_loads()
    p('v_lshlrev_b32 v6, 4, %s' % vr(vJ))
    p('v_lshl_add_u32 %s, %s, 11, v6' % (vr(vIn), vr(vH)))
    p('v_lshl_add_u32 v6, %s, 2, v1' % vr(vH))
    p('v_and_b32 v6, 7, v6')
    p('v_lshlrev_b32 v6, 4, v6')
    p('v_add_u32 %s, %d, v6' % (vr(vSt), 4096 + (AOFF if opt.hand == 'dual' else 0)))
    vI, vNT = 8, 21
    if opt.hand == 'dual':
        for i in range(4):
            p('v_add_u32 %s, 0x%x, %s' % (vr(vI + i), AOFF, vr(vIn)))
    p('v_lshlrev_b32 v6, 3, %s' % vr(vJ))
    p('v_add_u32 %s, %d, v6' % (vr(vSa), LDS_STAT))
    p('v_lshlrev_b32 v6, 2, %s' % vr(vJ))
    p('v_add_u32 %s, %d, v6' % (vr(vFa), LDS_F))
    p('v_lshrrev_b32 v6, 2, %s' % vr(vJ))
    p('v_mul_u32_u24 v7, %d, v6' % INBOX)
    if dual:
        p('s_mul_i32 %s, %s, %d' % (sr(sB2), sr(sS), INBOX))
        p('s_lshl_b32 s4, %s, 17' % sr(sG))
        p('s_add_u32 %s, %s, s4' % (sr(sB2), sr(sB2)))
    else:
        p('s_mul_i32 %s, s2, %d' % (sr(sB2), INBOX))
    p('s_mov_b32 %s, 0' % sr(sHi))
    p('s_mov_b32 %s, -1' % sr(sHi + 1))
    ST = 36
    D = 40
    W = 28
    if dual and opt.ptouch >= 0:
        p('v_mov_b32 v6, %d' % (LDS_F + 128))
        p('s_mov_b32 %s, 0x40000' % sr(sCap))
        p('L_SPIN0:')
        p('ds_read_b32 %s, v6' % vr(W))
        p('s_waitcnt lgkmcnt(0)')
        p('v_cmp_eq_u32 vcc, -1, %s' % vr(W))
        p('s_cbranch_vccz L_GOT0')
        p('s_sleep %d' % opt.spinsleep)
        p('s_sub_u32 %s, %s, 1' % (sr(sCap), sr(sCap)))
        p('s_cbranch_scc0 L_SPIN0')
        p('L_GOT0:')
        cm.issue('buffer_load_dwordx4 %s, %s, %s, %s offen sc1' % (vr(ST, 4), vr(vSt), sr(sWS, 4), sr(sB2)))
        for i in range(4):
            cm.issue('buffer_load_dwordx4 %s, %s, %s, %s offen offset:%d sc1' % (vr(D + 4 * i, 4), vr(vI + i), sr(sWS, 4), sr(sB2), i * 512))
    stamp('cflag')
    p('s_mov_b32 %s, 0x40000' % sr(sCap))
    p('L_SPIN:')
    p('ds_read_b64 %s, %s' % (vr(W, 2), vr(vSa)))
    p('s_waitcnt lgkmcnt(0)')
    p('v_max_u32 v6, %s, %s' % (vr(W), vr(W + 1)))
    p('v_cmp_eq_u32 vcc, -1, v6')
    p('s_cbranch_vccz L_GOT')
    p('s_sleep %d' % opt.spinsleep)
    p('s_sub_u32 %s, %s, 1' % (sr(sCap), sr(sCap)))
    p('s_cbranch_scc0 L_SPIN')
    p('L_GOT:')
    stamp('cstat')
    Mg, fw = 32, 30
    p('s_add_u32 %s, %s, 1' % (sr(sT), sr(sE)))
    p('v_max_f32_dpp %s, %s, %s quad_perm:[1,0,3,2] row_mask:0xf bank_mask:0xf' % (vr(Mg), vr(W), vr(W)))
    p('v_mov_b32 %s, %s' % (vr(Mg + 2), sr(sT)))
    p('v_max_f32_dpp %s, %s, %s quad_perm:[2,3,0,1] row_mask:0xf bank_mask:0xf' % (vr(Mg), vr(Mg), vr(Mg)))
    if opt.hand == 'dual':
        p('v_not_b32 %s, %s' % (vr(vNT), vr(Mg + 2)))
        p('v_xor_b32 %s, s7, %s' % (vr(Mg + 3), vr(vNT)))
    else:
        p('v_not_b32 %s, %s' % (vr(Mg + 3), vr(Mg + 2)))
    p('v_sub_f32 %s, %s, %s' % (vr(fw), vr(W), vr(Mg)))
    p('v_exp_f32 %s, %s' % (vr(fw), vr(fw)))
    p('v_mul_f32 %s, %s, %s' % (vr(Mg + 1), vr(fw), vr(W + 1)))
    p('ds_write_b32 %s, %s' % (vr(vFa), vr(fw)))
    p('v_add_f32_dpp %s, %s, %s quad_perm:[1,0,3,2] row_mask:0xf bank_mask:0xf' % (vr(Mg + 1), vr(Mg + 1), vr(Mg + 1)))
    p('v_add_f32_dpp %s, %s, %s quad_perm:[2,3,0,1] row_mask:0xf bank_mask:0xf' % (vr(Mg + 1), vr(Mg + 1), vr(Mg + 1)))
    for k in range(4):
        p('s_bfe_u32 %s, %s, 0x%x' % (sr(sTb + k), sr(sT), (8 << 16) | (8 * k)))

    def statpub():
        if opt.hand == 'dual':
            p('s_add_u32 s6, %s, 0x%x' % (sr(sA), AOFF))
        p('s_mov_b64 exec, 0x11111111')
        if opt.hand == 'dual':
            cm.issue('buffer_store_dwordx4 %s, v7, %s, s6 offen%s' % (vr(Mg, 4), sr(sWS, 4), opt.aflag))
        cm.issue('buffer_store_dwordx4 %s, v7, %s, %s offen sc1' % (vr(Mg, 4), sr(sWS, 4), sr(sA)))
        p('s_mov_b64 exec, -1')

    sidx = []

    def statld():
        sidx[:] = [cm.issue('buffer_load_dwordx4 %s, %s, %s, %s offen sc1' % (vr(ST, 4), vr(vSt), sr(sWS, 4), sr(sB2)))]

    if opt.middelay:
        p('s_sleep %d' % opt.middelay)
    if opt.statpos == 'early':
        statpub()
    if opt.treepos == 'mid':
        tree_loads()
    if opt.touchout:
        p('s_lshl_b32 s4, s2, 8')
        cm.issue('buffer_load_dword v63, v19, %s, s4 offen' % sr(sOUT, 4))
    if opt.statld == 'mid':
        assert opt.statpos == 'early'
        statld()
    p('s_waitcnt lgkmcnt(0)')
    stamp('cpub')
    p('s_barrier')
    if opt.statpos != 'early':
        statpub()
    if opt.statld != 'mid':
        statld()
    stamp('bar2')

    def dloads(base=D):
        r = None
        for i in range(4):
            r = cm.issue('buffer_load_dwordx4 %s, %s, %s, %s offen offset:%d sc1' % (vr(base + 4 * i, 4), vr(vI + i if opt.hand == 'dual' else vIn), sr(sWS, 4), sr(sB2), i * 512))
        return r

    dloads()
    if opt.treepos == 'late':
        tree_loads()
    p('s_mov_b32 %s, 0x10000' % sr(sCap))
    if opt.treepos in ('front', 'mid'):
        cm.wait(tidx[0])
        tree_score()
    cm.wait(sidx[0])
    p('L_STAT:')
    p('v_xor_b32 v6, %s, %s' % (vr(ST + 2), vr(Mg + 2)))
    if opt.hand == 'dual':
        p('v_xor_b32 v4, %s, %s' % (vr(ST + 3), vr(vNT)))
        p('v_lshrrev_b32 v5, 4, v4')
    else:
        p('v_xor_b32 v5, %s, %s' % (vr(ST + 3), vr(Mg + 3)))
    p('v_or_b32 v6, v5, v6')
    p('v_cmp_ne_u32 vcc, 0, v6')
    p('s_cbranch_vccz L_STATOK')
    p('s_sub_u32 %s, %s, 1' % (sr(sCap), sr(sCap)))
    p('s_cbranch_scc1 L_STATOK')
    if opt.pollsleep:
        p('s_sleep %d' % opt.pollsleep)
    if opt.hand == 'dual':
        p('s_cmp_gt_u32 %s, 0x%x' % (sr(sCap), 0x10000 - 1 - opt.patience))
        p('s_cbranch_scc1 L_NOALT')
        p('v_xor_b32 %s, 0x%x, %s' % (vr(vSt), AOFF, vr(vSt)))
        p('L_NOALT:')
    p('buffer_load_dwordx4 %s, %s, %s, %s offen sc1' % (vr(ST, 4), vr(vSt), sr(sWS, 4), sr(sB2)))
    p('s_waitcnt vmcnt(0)')
    p('s_branch L_STAT')
    p('L_STATOK:')
    stamp('sready')
    if opt.hand == 'dual':
        p('v_cmp_eq_u32 vcc, s7, v4')
        p('v_mov_b32 v5, 0x%x' % AOFF)
        p('v_cndmask_b32 v4, 0, v5, vcc')
        for i in range(4):
            p('v_add_u32_dpp %s, v4, %s row_newbcast:%d row_mask:0xf bank_mask:0xf' % (vr(vI + i), vr(vIn), i))
    if opt.treepos == 'late':
        p('s_waitcnt vmcnt(0)')
        tree_score()
    Mx, f, ft, fl, rr = 56, 57, 58, 59, 60
    p('v_max_f32_dpp %s, %s, %s quad_perm:[1,0,3,2] row_mask:0xf bank_mask:0xf' % (vr(Mx), vr(ST), vr(ST)))
    p('v_max_f32_dpp %s, %s, %s quad_perm:[2,3,0,1] row_mask:0xf bank_mask:0xf' % (vr(Mx), vr(Mx), vr(Mx)))
    p('v_max_f32_dpp %s, %s, %s row_half_mirror row_mask:0xf bank_mask:0xf' % (vr(Mx), vr(Mx), vr(Mx)))
    p('v_max_f32 %s, %s, %s' % (vr(Mx), vr(Mx), vr(vT)))
    p('v_sub_f32 %s, %s, %s' % (vr(f), vr(ST), vr(Mx)))
    p('v_sub_f32 %s, %s, %s' % (vr(ft), vr(vT), vr(Mx)))
    p('v_exp_f32 %s, %s' % (vr(f), vr(f)))
    p('v_exp_f32 %s, %s' % (vr(ft), vr(ft)))
    p('v_mul_f32 %s, %s, %s' % (vr(fl), vr(f), vr(ST + 1)))
    p('v_add_f32_dpp %s, %s, %s quad_perm:[1,0,3,2] row_mask:0xf bank_mask:0xf' % (vr(fl), vr(fl), vr(fl)))
    p('v_add_f32_dpp %s, %s, %s quad_perm:[2,3,0,1] row_mask:0xf bank_mask:0xf' % (vr(fl), vr(fl), vr(fl)))
    p('v_add_f32_dpp %s, %s, %s row_half_mirror row_mask:0xf bank_mask:0xf' % (vr(fl), vr(fl), vr(fl)))
    p('v_add_f32 %s, %s, %s' % (vr(fl), vr(fl), vr(ft)))
    p('v_rcp_f32 %s, %s' % (vr(rr), vr(fl)))
    p('v_mul_f32 %s, %s, %s' % (vr(f), vr(f), vr(rr)))
    p('v_mul_f32 %s, %s, %s' % (vr(ft), vr(ft), vr(rr)))
    A = 64
    p('v_mul_f32 v5, %s, %s' % (vr(ft), vr(VT0)))
    p('v_mul_f32 v6, %s, %s' % (vr(ft), vr(VT1)))
    p('v_cndmask_b32 %s, v5, 0, %s' % (vr(A), sr(sHi, 2)))
    p('v_cndmask_b32 %s, v6, 0, %s' % (vr(A + 1), sr(sHi, 2)))
    p('v_cndmask_b32 %s, 0, v5, %s' % (vr(A + 2), sr(sHi, 2)))
    p('v_cndmask_b32 %s, 0, v6, %s' % (vr(A + 3), sr(sHi, 2)))
    p('s_mov_b32 %s, 0x10000' % sr(sCap))
    mx = 61

    def dcheck(base):
        for i in range(4):
            for k in range(4):
                p('v_xor_b32 %s, %s, %s' % (vr(base + 4 * i + k), sr(sTb + k), vr(base + 4 * i + k)))
            if i == 0:
                p('v_or3_b32 %s, %s, %s, %s' % (vr(mx), vr(base), vr(base + 1), vr(base + 2)))
                p('v_mov_b32 %s, %s' % (vr(mx + 1), vr(base + 3))) if False else None
            elif i == 1:
                p('v_or3_b32 %s, %s, %s, %s' % (vr(mx + 1), vr(base + 3), vr(base + 4), vr(base + 5)))
                p('v_or3_b32 %s, %s, %s, %s' % (vr(mx), vr(mx), vr(base + 6), vr(base + 7)))
            elif i == 2:
                p('v_or3_b32 %s, %s, %s, %s' % (vr(mx + 1), vr(mx + 1), vr(base + 8), vr(base + 9)))
                p('v_or3_b32 %s, %s, %s, %s' % (vr(mx), vr(mx), vr(base + 10), vr(base + 11)))
            else:
                p('v_or3_b32 %s, %s, %s, %s' % (vr(mx + 1), vr(mx + 1), vr(base + 12), vr(base + 13)))
                p('v_or3_b32 %s, %s, %s, %s' % (vr(mx), vr(mx), vr(base + 14), vr(base + 15)))
        p('v_or_b32 %s, %s, %s' % (vr(mx), vr(mx), vr(mx + 1)))
        p('v_and_b32 %s, 0xff, %s' % (vr(mx), vr(mx)))
        p('v_cmp_ne_u32 vcc, 0, %s' % vr(mx))

    def finish(base):
        stamp('dready')
        for i in range(4):
            for k in range(4):
                p('v_fmac_f32_dpp %s, %s, %s row_newbcast:%d row_mask:0xf bank_mask:0xf' % (vr(A + k), vr(f), vr(base + 4 * i + k), i))
        p('v_permlane32_swap_b32 %s, %s' % (vr(A), vr(A + 2)))
        p('v_permlane32_swap_b32 %s, %s' % (vr(A + 1), vr(A + 3)))
        p('v_add_f32 %s, %s, %s' % (vr(A), vr(A), vr(A + 2)))
        p('v_add_f32 %s, %s, %s' % (vr(A + 1), vr(A + 1), vr(A + 3)))
        p('v_cvt_pk_bf16_f32 %s, %s, %s' % (vr(A), vr(A), vr(A + 1)))
        p('s_lshl_b32 s4, s2, 8')
        osc = {0: '', 1: ' sc1', 2: ' sc0 sc1', 3: ' nt'}[opt.outsc]
        p('buffer_store_short %s, %s, %s, s4 offen%s' % (vr(A), vr(vOutOff), sr(sOUT, 4), osc))
        p('buffer_store_short_d16_hi %s, %s, %s, s4 offen offset:16%s' % (vr(A), vr(vOutOff), sr(sOUT, 4), osc))
        p('s_cmp_lg_u32 %s, 0' % sr(sS))
        p('s_cbranch_scc1 L_DONE')
        p('v_mov_b32 v5, %s' % sr(sOk))
        p('s_mov_b64 exec, 1')
        p('buffer_store_dword %s, v5, %s, 0 offen' % (vr(Mg + 2), sr(sWS, 4)))
        p('s_mov_b64 exec, -1')
        p('s_branch L_DONE') if False else None

    p('s_waitcnt vmcnt(0)')
    p('L_POLL:')
    dcheck(D)
    p('s_cbranch_vccz L_READY')
    p('s_sub_u32 %s, %s, 1' % (sr(sCap), sr(sCap)))
    p('s_cbranch_scc1 L_READY')
    if opt.hand == 'dual':
        p('s_cmp_lg_u32 %s, 0x%x' % (sr(sCap), 0x10000 - 1024))
        p('s_cbranch_scc1 L_NOSW')
        for i in range(4):
            p('v_mov_b32 %s, %s' % (vr(vI + i), vr(vIn)))
        p('L_NOSW:')
    if opt.pollsleep:
        p('s_sleep %d' % opt.pollsleep)
    dloads()
    p('s_waitcnt vmcnt(0)')
    p('s_branch L_POLL')
    p('L_READY:')
    finish(D)
    p('L_DONE:')
    stamp('end')
    dump_stamps()
    p('L_END:')
    p('s_endpgm')
    body = p.text(verbose=opt.verbose)
    out = HEADER
    out += '; Override launch geometry by editing the next line (default: block=256,\n'
    out += '; grid=ceil(out_elems/256), lds=0). Harness parses it; keep it on one line.\n'
    out += '; @launch grid=(256,1,1) block=(320,1,1) lds=%d\n' % LDS_SIZE
    out += '.amdgcn_target "amdgcn-amd-amdhsa--gfx950"\n.text\n.globl %s_kernel\n.p2align 8\n.type %s_kernel,@function\n%s_kernel:\n' % (NAME, NAME, NAME)
    out += body
    out += '.section .rodata,"a"\n.p2align 6\n.amdhsa_kernel %s_kernel\n' % NAME
    out += '  .amdhsa_next_free_vgpr 232\n  .amdhsa_next_free_sgpr %d\n  .amdhsa_accum_offset 232\n' % (102 if opt.prof else 72)
    out += '  .amdhsa_group_segment_fixed_size 0\n  .amdhsa_kernarg_size 72\n  .amdhsa_user_sgpr_count 2\n'
    out += '  .amdhsa_user_sgpr_kernarg_segment_ptr 1\n  .amdhsa_system_sgpr_workgroup_id_x 1\n.end_amdhsa_kernel\n'
    return out


if __name__ == '__main__':
    ap = argparse.ArgumentParser()
    ap.add_argument('-o', default='v3.s')
    ap.add_argument('--bar0', type=int, default=2)
    ap.add_argument('--qpos', type=int, default=2)
    ap.add_argument('--vlead', type=int, default=2)
    ap.add_argument('--vstep', type=int, default=2)
    ap.add_argument('--spinsleep', type=int, default=2)
    ap.add_argument('--cprio', type=int, default=3)
    ap.add_argument('--pollsleep', type=int, default=0)
    ap.add_argument('--treepos', default='mid')
    ap.add_argument('--statpos', default='early')
    ap.add_argument('--statld', default='mid')
    ap.add_argument('--statafter', type=int, default=1)
    ap.add_argument('--touchout', type=int, default=0)
    ap.add_argument('--middelay', type=int, default=0)
    ap.add_argument('--outsc', type=int, default=0)
    ap.add_argument('--epos', type=int, default=0)
    ap.add_argument('--map', default='')
    ap.add_argument('--hand', default='sc1')
    ap.add_argument('--aflag', default='')
    ap.add_argument('--ptouch', type=int, default=5)
    ap.add_argument('--patience', type=int, default=32)
    ap.add_argument('--win', type=int, default=0)
    ap.add_argument('--gran', type=int, default=4)
    ap.add_argument('--tmap', default='w8')
    ap.add_argument('--rot', default='none')
    ap.add_argument('--verbose', action='store_true')
    ap.add_argument('--prof', action='store_true')
    opt = ap.parse_args()
    open(opt.o, 'w').write(gen(opt))
    print('wrote', opt.o)
```

```python
import sys, struct, math, argparse
from asmlib import Prog

NAME = 'standalone__tree_speculative_verify_tree_attention_over_candidate_token_tree__decode'
HEADER = open('cdna_kernels/%s.s.ref' % NAME).read().split('; Override launch')[0]


def f2u(x):
    return struct.unpack('<I', struct.pack('<f', x))[0]


def vr(a, n=1):
    return 'v%d' % a if n == 1 else 'v[%d:%d]' % (a, a + n - 1)


def sr(a, n=1):
    return 's%d' % a if n == 1 else 's[%d:%d]' % (a, a + n - 1)


INBOX = 4224
EPOCH = 256 * INBOX
AOFF = 0x10000
GST = 0x20000
STAMPS = ['entry', 'karg', 'kiss', 'K0', 'K7', 'sm', 'viss', 'vend', 'bar2', 'pub',
          'cflag', 'cstat', 'cpub', 'sready', 'dready', 'end']

LDS_STAT = 131072
LDS_F = LDS_STAT + 256
LDS_O = LDS_STAT + 512
LDS_SIZE = LDS_O + 4 * 4224


class VM:
    def __init__(self, p):
        self.p = p
        self.n = 0

    win = 0
    gran = 4
    done = -1

    def issue(self, text):
        if self.win and self.n % self.gran == 0 and self.n + self.gran > self.win:
            need = self.n + self.gran - self.win - 1
            if need > self.done:
                self.wait(need)
        self.p(text)
        self.n += 1
        return self.n - 1

    def wait(self, idx):
        k = self.n - 1 - idx
        assert 0 <= k <= 63, k
        self.done = max(self.done, idx)
        self.p('s_waitcnt vmcnt(%d)' % k)


def gen(opt):
    p = Prog()
    dual = opt.hand == 'dual'

    def epoch_addr(dst):
        if dual:
            p('s_lshl_b32 %s, %s, 17' % (dst, sr(sG)))
            p('s_add_u32 %s, %s, 0xC000' % (dst, dst))
        else:
            p('s_lshl_b32 %s, %s, 7' % (dst, sr(sG)))
            p('s_add_u32 %s, %s, 0x%x' % (dst, dst, EPOCH))
    sK, sV, sQ, sWS, sOUT, sDBG, sKT, sVT, sMK = 8, 12, 16, 20, 24, 28, 32, 36, 40
    sBT = 44
    sC, sPe, sPo = 52, 53, 54
    sLW = 55
    sHi = 56
    sG, sS, sCap, sA, sB2, sOk = 58, 59, 60, 61, 62, 63
    sE, sT, sTb = 64, 65, 66
    C = math.log2(math.e) / math.sqrt(128.0)

    def stamp(name):
        if opt.prof:
            i = STAMPS.index(name)
            p('s_memrealtime s[%d:%d]' % (70 + 2 * i, 71 + 2 * i))

    def dump_stamps(vtmp=(5, 6)):
        if opt.prof:
            a, b = vtmp
            p('s_waitcnt lgkmcnt(0)')
            p('v_mov_b32 v%d, 0' % b)
            for i in range(16):
                p('v_writelane_b32 v%d, s%d, %d' % (b, 70 + 2 * i, i))
            p('s_lshl_b32 s4, s2, 3')
            p('s_add_u32 s4, s4, s3')
            p('s_lshl_b32 s4, s4, 6')
            p('s_add_u32 s4, s4, 0x8000000')
            p('v_lshlrev_b32 v%d, 2, v1' % a)
            p('s_mov_b64 exec, 0xffff')
            p('buffer_store_dword v%d, v%d, %s, s4 offen' % (b, a, sr(sWS, 4)))
            p('s_mov_b64 exec, -1')

    def srd(r, size):
        p('s_mov_b32 %s, 0x%x' % (sr(r + 2), size))
        p('s_mov_b32 %s, 0x20000' % sr(r + 3))

    p('s_cmp_ge_u32 s2, 256')
    p('s_cbranch_scc1 L_END')
    if opt.prof:
        for i in range(16):
            p('s_mov_b32 s%d, 0' % (70 + 2 * i))
    stamp('entry')
    if opt.map == 'xcd':
        if opt.xrot:
            p('s_add_u32 s4, s2, %d' % opt.xrot)
            p('s_and_b32 s4, s4, 7')
        else:
            p('s_and_b32 s4, s2, 7')
        p('s_lshl_b32 s4, s4, 5')
        p('s_bfe_u32 s5, s2, 0x20003')
        p('s_lshl_b32 s5, s5, 3')
        p('s_lshr_b32 s2, s2, 5')
        p('s_or_b32 s2, s2, s4')
        p('s_or_b32 s2, s2, s5')
    elif opt.map == 'near':
        p('s_and_b32 s4, s2, 3')
        p('s_lshl_b32 s4, s4, 6')
        p('s_bfe_u32 s5, s2, 0x10002')
        p('s_lshl_b32 s5, s5, 2')
        p('s_or_b32 s4, s4, s5')
        p('s_bfe_u32 s5, s2, 0x20003')
        p('s_or_b32 s4, s4, s5')
        p('s_lshr_b32 s2, s2, 5')
        p('s_lshl_b32 s2, s2, 3')
        p('s_or_b32 s2, s2, s4')
    elif opt.map == 'xcd2':
        p('s_and_b32 s4, s2, 7')
        p('s_lshl_b32 s4, s4, 5')
        p('s_lshr_b32 s2, s2, 3')
        p('s_or_b32 s2, s2, s4')
    for r, off in ((sK, 8), (sV, 16), (sQ, 0), (sWS, 64)):
        p('s_load_dwordx2 %s, s[0:1], %d' % (sr(r, 2), off))
    p('v_lshrrev_b32 v5, 6, v0')
    p('v_and_b32 v1, 63, v0')
    p('v_readfirstlane_b32 s3, v5')
    srd(sK, 0x2000000)
    srd(sV, 0x2000000)
    srd(sQ, 65536)
    srd(sWS, 0x10000000)
    p('s_lshr_b32 %s, s2, 3' % sr(sG))
    p('s_and_b32 %s, s2, 7' % sr(sS))
    p('s_cmp_eq_u32 s3, 4')
    p('s_cbranch_scc1 L_CTRL')

    vK, vV, vQ = 2, 6, 7
    vRd = 8
    vLw, vLr, vFr, vPub = 12, 13, 14, 15
    S, ACC, L, ONES, T0 = 16, 32, 48, 52, 56
    B, AT, VA, VB = 60, 92, 104, 168
    QL, QH, KF = VB, VB + 16, VB + 32
    vm = VM(p)
    vm.win = opt.win
    vm.gran = opt.gran
    p('v_and_b32 v8, 15, v1')
    p('v_lshrrev_b32 v9, 4, v1')
    p('v_lshlrev_b32 v10, 2, v9')
    p('v_xor_b32 v10, v8, v10')
    p('v_lshlrev_b32 v11, 8, v9')
    p('v_lshl_or_b32 %s, v10, 4, v11' % vr(vK))
    for i in range(1, 4):
        p('v_xor_b32 %s, %d, %s' % (vr(vK + i), 16 * i, vr(vK)))
    p('s_lshl_b32 %s, s3, 15' % sr(sLW))
    if opt.tmap == 'w8':
        p('s_lshl_b32 s4, s2, 17')
        p('s_add_u32 s4, s4, %s' % sr(sLW))
        lstride = 12
    elif opt.tmap == 'il':
        p('s_lshl_b32 s4, s2, 17')
        p('s_lshl_b32 s5, s3, 12')
        p('s_add_u32 s4, s4, s5')
        lstride = 14
    elif opt.tmap == 'gil':
        p('s_lshl_b32 s4, %s, 20' % sr(sG))
        p('s_lshl_b32 s5, %s, 14' % sr(sS))
        p('s_add_u32 s4, s4, s5')
        p('s_lshl_b32 s5, s3, 12')
        p('s_add_u32 s4, s4, s5')
        lstride = 17
    elif opt.tmap == 'gil2':
        p('s_lshl_b32 s4, %s, 20' % sr(sG))
        p('s_lshl_b32 s5, %s, 12' % sr(sS))
        p('s_add_u32 s4, s4, s5')
        p('s_lshl_b32 s5, s3, 15')
        p('s_add_u32 s4, s4, s5')
        lstride = 17
    if opt.map == 'near':
        p('s_lshl_b32 s4, %s, 20' % sr(sG))
        p('s_and_b32 s5, %s, 3' % sr(sS))
        p('s_lshl_b32 s5, s5, 18')
        p('s_add_u32 s4, s4, s5')
        p('s_lshl_b32 s5, s3, 16')
        p('s_add_u32 s4, s4, s5')
        p('s_mov_b32 %s, s4' % sr(sBT))
        for T in range(1, 8):
            p('s_add_u32 %s, s4, %d' % (sr(sBT + T), ((T & 1) << 12) | ((T >> 1) << 14)))
    elif opt.rot == 'none':
        p('s_mov_b32 %s, s4' % sr(sBT))
        for T in range(1, 8):
            p('s_add_u32 %s, s4, %d' % (sr(sBT + T), T << lstride))
    else:
        if opt.rot == 'w':
            p('s_lshl_b32 s5, s3, 1')
        elif opt.rot == 'wg':
            p('s_mov_b32 s5, %s' % sr(sS))
        elif opt.rot == 'g':
            p('s_mov_b32 s5, %s' % sr(sG))
        elif opt.rot == 'wwg':
            p('s_lshl_b32 s5, s3, 1')
            p('s_add_u32 s5, s5, %s' % sr(sS))
            p('s_add_u32 s5, s5, %s' % sr(sG))
        elif opt.rot == 'hash':
            p('s_lshl_b32 s5, s2, 2')
            p('s_add_u32 s5, s5, s3')
            p('s_mul_i32 s5, s5, 0x9E3779B1')
            p('s_lshr_b32 s5, s5, 29')
        for T in range(8):
            p('s_add_u32 s6, s5, %d' % T)
            p('s_and_b32 s6, s6, 7')
            p('s_lshl_b32 s6, s6, %d' % lstride)
            p('s_add_u32 %s, s4, s6' % sr(sBT + T))
    p('v_lshlrev_b32 %s, 4, v1' % vr(vV))
    epoch_addr(sr(sOk))
    p('s_waitcnt lgkmcnt(0)')
    stamp('karg')
    if opt.map == 'near':
        p('s_lshr_b32 s5, %s, 2' % sr(sS))
        p('s_xor_b32 s5, s5, %d' % opt.phase)
        p('s_add_u32 s6, %s, s4' % sr(sK))
        p('s_lshr_b32 s6, s6, 21')
        p('s_xor_b32 s6, s6, s5')
        p('s_and_b32 s6, s6, 1')
        p('s_lshl_b32 s6, s6, 13')
        if opt.vpar == 'same':
            p('v_or_b32 %s, s6, %s' % (vr(vV), vr(vV)))
        else:
            p('s_add_u32 s7, %s, s4' % sr(sV))
            p('s_lshr_b32 s7, s7, 21')
            p('s_xor_b32 s7, s7, s5')
            if opt.vpar == 'opp':
                p('s_xor_b32 s7, s7, 1')
            p('s_and_b32 s7, s7, 1')
            p('s_lshl_b32 s7, s7, 13')
            p('v_or_b32 %s, s7, %s' % (vr(vV), vr(vV)))
        for i in range(4):
            p('v_or_b32 %s, s6, %s' % (vr(vK + i), vr(vK + i)))
    if opt.epos == 0:
        p('s_buffer_load_dword %s, %s, %s' % (sr(sE), sr(sWS, 4), sr(sOk)))
    kidx = {}
    qidx = []

    def issue_q():
        for sl in range(4):
            qidx.append(vm.issue('buffer_load_dwordx4 %s, %s, %s, %s offen offset:%d' % (vr(QL + 4 * sl, 4), vr(vQ), sr(sQ, 4), sr(sA), sl * 64)))

    def setup_q():
        p('v_and_b32 v56, 7, v1')
        p('v_lshrrev_b32 v57, 4, v1')
        p('v_lshlrev_b32 v57, 4, v57')
        p('v_lshl_or_b32 %s, v56, 8, v57' % vr(vQ))
        p('s_lshl_b32 %s, %s, 11' % (sr(sA), sr(sG)))

    for T in range(8):
        p('s_add_u32 m0, %s, %d' % (sr(sLW), T * 4096))
        for i in range(4):
            kidx[(T, i)] = vm.issue('buffer_load_dwordx4 %s, %s, %s offen offset:%d lds' % (vr(vK + i), sr(sK, 4), sr(sBT + T), i * 1024))
        if T == opt.bar0 - 1:
            p('s_barrier')
        if T == opt.qpos - 1:
            setup_q()
            issue_q()
    stamp('kiss')
    if opt.epos == 1:
        p('s_buffer_load_dword %s, %s, %s' % (sr(sE), sr(sWS, 4), sr(sOk)))
    vidx = {}

    def vdst(j):
        return (VA + 4 * j) if j < 16 else (VB + 4 * (j - 16))

    def issue_v(j):
        vidx[j] = vm.issue('buffer_load_dwordx4 %s, %s, %s, %s offen offset:%d' % (vr(vdst(j), 4), vr(vV), sr(sV, 4), sr(sBT + (j >> 2)), (j & 3) * 1024))

    nv = [0]

    def issue_v_upto(n):
        while nv[0] < min(n, 16):
            issue_v(nv[0]); nv[0] += 1

    issue_v_upto(opt.vlead)
    p('s_mov_b32 %s, 0x%08x' % (sr(sC), f2u(C)))
    p('s_mov_b32 %s, 0x05040100' % sr(sPe))
    p('s_mov_b32 %s, 0x07060302' % sr(sPo))
    p('s_mov_b32 %s, 0xff00ff00' % sr(sHi))
    p('s_mov_b32 %s, 0xff00ff00' % sr(sHi + 1))
    for r in range(4):
        p('v_mov_b32 %s, 0x3f803f80' % vr(ONES + r))
    for r in range(32):
        p('v_mov_b32 %s, 0' % vr(B + r))
    p('v_and_b32 v56, 3, v1')
    p('v_bfe_u32 v57, v1, 2, 2')
    p('v_lshl_or_b32 v56, v56, 2, v57')
    p('v_and_b32 v57, 15, v1')
    p('v_lshrrev_b32 v58, 4, v1')
    p('v_xor_b32 v57, v57, v58')
    p('v_lshlrev_b32 v57, 4, v57')
    p('v_lshl_or_b32 v56, v56, 8, v57')
    p('v_add_u32 %s, %s, v56' % (vr(vRd), sr(sLW)))
    for sl in range(1, 4):
        p('v_xor_b32 %s, %d, %s' % (vr(vRd + sl), sl * 64, vr(vRd)))
    p('v_and_b32 v56, 7, v1')
    p('v_mul_u32_u24 v56, 528, v56')
    p('v_bfe_u32 v57, v1, 3, 1')
    p('v_lshl_add_u32 v56, v57, 8, v56')
    p('v_lshl_add_u32 v56, v58, 4, v56')
    p('s_mul_i32 s4, s3, 4224')
    p('s_add_u32 s4, s4, %d' % LDS_O)
    p('v_add_u32 %s, s4, v56' % vr(vLw))
    p('v_lshrrev_b32 v56, 5, v1')
    p('v_and_b32 v57, 31, v1')
    p('v_lshlrev_b32 v57, 4, v57')
    p('v_mul_u32_u24 v58, 528, v56')
    p('v_add_u32 v58, v58, v57')
    p('s_mul_i32 s4, s3, 1056')
    p('s_add_u32 s4, s4, %d' % LDS_O)
    p('v_add_u32 %s, s4, v58' % vr(vLr))
    p('s_lshl_b32 s4, s3, 5')
    p('s_add_u32 s4, s4, %d' % LDS_F)
    p('v_lshlrev_b32 v58, 4, v56')
    p('v_add_u32 %s, s4, v58' % vr(vFr))
    p('v_mul_u32_u24 v58, %d, v56' % INBOX)
    p('v_add_u32 %s, v58, v57' % vr(vPub))
    if dual:
        p('s_mul_i32 s4, s3, %d' % (2 * INBOX))
        p('s_lshl_b32 s5, %s, 17' % sr(sG))
        p('s_add_u32 s4, s4, s5')
    else:
        p('s_lshl_b32 s4, %s, 3' % sr(sG))
        p('s_lshl_b32 s5, s3, 1')
        p('s_add_u32 s4, s4, s5')
        p('s_mul_i32 s4, s4, %d' % INBOX)
    p('s_lshl_b32 s5, %s, 9' % sr(sS))
    p('s_add_u32 %s, s4, s5' % sr(sB2))
    if opt.hand == 'dual':
        p('s_add_u32 s7, %s, 0x%x' % (sr(sB2), AOFF))
        if opt.ptouch >= 0:
            p('v_mov_b32 v0, %d' % (LDS_F + 128))

    def pretouch():
        p('s_mov_b64 exec, 1')
        p('ds_write_b32 v0, v0')
        p('s_mov_b64 exec, -1')
    for T in range(8):
        last = kidx[(T, 3)]
        if T == 0:
            last = max(last, qidx[-1])
        vm.wait(last)
        if T == 0:
            stamp('K0')
        if T == 7:
            stamp('K7')
        fs = KF + 16 * (T & 1)
        if dual and T == opt.ptouch:
            pretouch()
        for sl in range(4):
            p('ds_read_b128 %s, %s offset:%d' % (vr(fs + 4 * sl, 4), vr(vRd + sl), T * 4096))
        if T == 0:
            for k in range(16):
                p('v_cndmask_b32 %s, 0, %s, %s' % (vr(QH + k), vr(QL + k), sr(sHi, 2)))
            for k in range(16):
                p('v_cndmask_b32 %s, %s, 0, %s' % (vr(QL + k), vr(QL + k), sr(sHi, 2)))
        issue_v_upto(opt.vlead + opt.vstep * (T + 1))

        def qk(T):
            fs = KF + 16 * (T & 1)
            q = QH if (T & 1) else QL
            acc = S + 4 * (T >> 1)
            for sl in range(4):
                src = '0' if (sl == 0 and not (T & 1)) else vr(acc, 4)
                p('v_mfma_f32_16x16x32_bf16 %s, %s, %s, %s' % (vr(acc, 4), vr(fs + 4 * sl, 4), vr(q + 4 * sl, 4), src))
        if T > 0:
            p('s_waitcnt lgkmcnt(4)')
            qk(T - 1)
    issue_v_upto(16)
    p('s_waitcnt lgkmcnt(0)')
    qk(7)
    m, t = T0, T0 + 1
    p('v_max3_f32 %s, %s, %s, %s' % (vr(m), vr(S), vr(S + 1), vr(S + 2)))
    p('v_max3_f32 %s, %s, %s, %s' % (vr(t), vr(S + 3), vr(S + 4), vr(S + 5)))
    p('v_max3_f32 %s, %s, %s, %s' % (vr(m), vr(m), vr(S + 6), vr(S + 7)))
    p('v_max3_f32 %s, %s, %s, %s' % (vr(t), vr(t), vr(S + 8), vr(S + 9)))
    p('v_max3_f32 %s, %s, %s, %s' % (vr(m), vr(m), vr(S + 10), vr(S + 11)))
    p('v_max3_f32 %s, %s, %s, %s' % (vr(t), vr(t), vr(S + 12), vr(S + 13)))
    p('v_max3_f32 %s, %s, %s, %s' % (vr(m), vr(m), vr(S + 14), vr(S + 15)))
    p('v_max_f32 %s, %s, %s' % (vr(m), vr(m), vr(t)))
    p('v_max_f32_dpp %s, %s, %s row_ror:8 row_mask:0xf bank_mask:0xf' % (vr(m), vr(m), vr(m)))
    p('v_mov_b32 %s, %s' % (vr(t), vr(m)))
    p('v_permlane16_swap_b32 %s, %s' % (vr(m), vr(t)))
    p('v_max_f32 %s, %s, %s' % (vr(m), vr(m), vr(t)))
    p('v_mov_b32 %s, %s' % (vr(t), vr(m)))
    p('v_permlane32_swap_b32 %s, %s' % (vr(m), vr(t)))
    p('v_max_f32 %s, %s, %s' % (vr(m), vr(m), vr(t)))
    vMc = T0 + 2
    p('v_mul_f32 %s, %s, %s' % (vr(vMc), sr(sC), vr(m)))
    for k in range(16):
        p('v_fma_f32 %s, %s, %s, -%s' % (vr(S + k), vr(S + k), sr(sC), vr(vMc)))
    for k in range(16):
        p('v_exp_f32 %s, %s' % (vr(S + k), vr(S + k)))
    BL = lambda u: B + 8 * u
    BH = lambda u: B + 8 * u + 4
    p('s_mov_b64 exec, 0x00ff00ff00ff00ff') if False else None
    p('s_not_b64 exec, %s' % sr(sHi, 2))
    for u in range(4):
        p('v_cvt_pk_bf16_f32 %s, %s, %s' % (vr(BL(u)), vr(S + 4 * u), vr(S + 4 * u + 1)))
        p('v_cvt_pk_bf16_f32 %s, %s, %s' % (vr(BL(u) + 1), vr(S + 4 * u + 2), vr(S + 4 * u + 3)))
    p('s_mov_b64 exec, %s' % sr(sHi, 2))
    for u in range(4):
        p('v_cvt_pk_bf16_f32 %s, %s, %s' % (vr(BH(u) + 2), vr(S + 4 * u), vr(S + 4 * u + 1)))
        p('v_cvt_pk_bf16_f32 %s, %s, %s' % (vr(BH(u) + 3), vr(S + 4 * u + 2), vr(S + 4 * u + 3)))
    p('s_mov_b64 exec, -1')
    for u in range(4):
        p('v_mov_b32_dpp %s, %s row_ror:8 row_mask:0xf bank_mask:0x3' % (vr(BL(u) + 2), vr(BH(u) + 2)))
        p('v_mov_b32_dpp %s, %s row_ror:8 row_mask:0xf bank_mask:0x3' % (vr(BL(u) + 3), vr(BH(u) + 3)))
    for u in range(4):
        p('v_mov_b32_dpp %s, %s row_ror:8 row_mask:0xf bank_mask:0xc' % (vr(BH(u)), vr(BL(u))))
        p('v_mov_b32_dpp %s, %s row_ror:8 row_mask:0xf bank_mask:0xc' % (vr(BH(u) + 1), vr(BL(u) + 1)))
    for u in range(4):
        p('v_mfma_f32_16x16x32_bf16 %s, %s, %s, %s' % (vr(L, 4), vr(ONES, 4), vr(BL(u), 4), '0' if u == 0 else vr(L, 4)))
    def statw():
        p('v_lshlrev_b32 %s, 5, v1' % vr(t))
        p('s_lshl_b32 s4, s3, 3')
        p('s_add_u32 s4, s4, %d' % LDS_STAT)
        p('v_add_u32 %s, s4, %s' % (vr(t), vr(t)))
        p('v_min_u32 %s, -2, %s' % (vr(vMc), vr(vMc)))
        p('v_min_u32 %s, -2, %s' % (vr(vMc + 1), vr(L)))
        p('s_mov_b64 exec, 0xff')
        p('ds_write_b64 %s, %s' % (vr(t), vr(vMc, 2)))
        p('s_mov_b64 exec, -1')
    if not opt.statafter:
        statw()
    stamp('sm')
    for j in range(16, 32):
        issue_v(j)
    if opt.statafter:
        statw()
    stamp('viss')
    vTag = T0
    p('s_add_u32 %s, %s, 1' % (sr(sT), sr(sE)))
    for k in range(4):
        p('s_mov_b32 %s, 0x%08x' % (sr(sTb + k), 0x07060500 | k))
    p('v_mov_b32 %s, %s' % (vr(vTag), sr(sT)))

    def perm(u, e, r, dst):
        sel = sPo if (e & 1) else sPe
        hi = vdst(8 * u + 2 * r + 1) + (e >> 1)
        lo = vdst(8 * u + 2 * r) + (e >> 1)
        p('v_perm_b32 %s, %s, %s, %s' % (vr(dst), vr(hi), vr(lo), sr(sel)))

    def mf(u, e, a):
        src = '0' if (u == 0 and e < 4) else vr(ACC + 4 * (e & 3), 4)
        p('v_mfma_f32_16x16x32_bf16 %s, %s, %s, %s' % (vr(ACC + 4 * (e & 3), 4), vr(a, 4), vr(BL(u) if e < 4 else BH(u), 4), src))

    def pv(u):
        sets = [AT, AT + 4, AT + 8]
        for r in range(4):
            perm(u, 0, r, sets[0] + r)
        for e in range(8):
            if e + 1 < 8:
                for r in range(4):
                    perm(u, e + 1, r, sets[(e + 1) % 3] + r)
            mf(u, e, sets[e % 3])

    for u in range(3):
        vm.wait(vidx[8 * u + 7])
        pv(u)
    A3 = VA
    for r in range(4):
        vm.wait(vidx[24 + 2 * r + 1])
        if r == 3:
            stamp('vend')
        if r < 3:
            for e in range(8):
                perm(3, e, r, A3 + 4 * e + r)
    perm(3, 0, 3, A3 + 3)
    perm(3, 1, 3, A3 + 7)
    for e in range(8):
        if e + 2 < 8:
            perm(3, e + 2, 3, A3 + 4 * (e + 2) + 3)
        mf(3, e, A3 + 4 * e)
        if e >= 6:
            pass
    for e in range(4):
        p('ds_write_b128 %s, %s offset:%d' % (vr(vLw), vr(ACC + 4 * e, 4), e * 64))
    p('s_waitcnt lgkmcnt(0)')
    p('s_barrier')
    stamp('bar2')
    R, F = S, L
    p('ds_read_b128 %s, %s' % (vr(F, 4), vr(vFr)))
    for w in range(4):
        p('ds_read_b128 %s, %s offset:%d' % (vr(R + 4 * w, 4), vr(vLr), w * 4224))
    for w in range(4):
        p('s_waitcnt lgkmcnt(%d)' % (3 - w))
        fp = vr(F + (w & 2), 2)
        o = w & 1
        for hh in range(2):
            src = vr(R + 4 * w + 2 * hh, 2)
            dst = vr(R + 2 * hh, 2)
            if w == 0:
                p('v_pk_mul_f32 %s, %s, %s op_sel:[0,%d] op_sel_hi:[1,%d]' % (dst, src, fp, o, o))
            else:
                p('v_pk_fma_f32 %s, %s, %s, %s op_sel:[0,%d,0] op_sel_hi:[1,%d,1]' % (dst, src, fp, dst, o, o))
    for r in range(4):
        p('v_perm_b32 %s, %s, %s, %s' % (vr(R + r), vr(R + r), vr(vTag), sr(sTb + r)))
    if opt.hand == 'dual':
        p('buffer_store_dwordx4 %s, %s, %s, s7 offen%s' % (vr(R, 4), vr(vPub), sr(sWS, 4), opt.aflag))
    p('buffer_store_dwordx4 %s, %s, %s, %s offen sc1' % (vr(R, 4), vr(vPub), sr(sWS, 4), sr(sB2)))
    stamp('pub')
    dump_stamps()
    p('s_endpgm')

    p('L_CTRL:')
    if opt.cprio:
        p('s_setprio %d' % opt.cprio)
    for r, off in ((sKT, 24), (sVT, 32), (sMK, 40), (sOUT, 48)):
        p('s_load_dwordx2 %s, s[0:1], %d' % (sr(r, 2), off))
    for r, size in ((sKT, 8192), (sVT, 8192), (sMK, 16), (sOUT, 65536)):
        srd(r, size)
    vH, vJ = 2, 3
    if opt.hand == 'dual':
        p('s_getreg_b32 s7, hwreg(HW_REG_XCC_ID, 0, 4)')
    if opt.prof:
        p('s_getreg_b32 s74, hwreg(HW_REG_XCC_ID, 0, 4)')
        p('s_add_u32 s74, s74, 1')
    p('v_mov_b32 v8, -1')
    p('v_lshlrev_b32 v5, 2, v1')
    p('v_add_u32 v5, %d, v5' % LDS_STAT)
    p('ds_write_b32 v5, v8')
    if dual and opt.ptouch >= 0:
        p('ds_write_b32 v5, v8 offset:256')
    p('v_lshrrev_b32 %s, 5, v1' % vr(vH))
    p('v_and_b32 %s, 31, v1' % vr(vJ))
    epoch_addr(sr(sOk))
    p('s_mul_i32 %s, %s, %d' % (sr(sA), sr(sG), GST if dual else 8 * INBOX))
    p('s_lshl_b32 s4, %s, 4' % sr(sS))
    p('s_add_u32 %s, %s, s4' % (sr(sA), sr(sA)))
    p('s_add_u32 %s, %s, 4096' % (sr(sA), sr(sA)))
    p('s_waitcnt lgkmcnt(0)')
    stamp('karg')
    p('s_buffer_load_dword %s, %s, %s' % (sr(sE), sr(sWS, 4), sr(sOk)))
    if opt.bar0:
        p('s_barrier')
    TQ, TK, TM, VT0, VT1, vOutOff = 12, 13, 14, 15, 16, 17
    vT = 20
    vIn, vSt, vSa, vFa = 22, 23, 24, 25
    cm = VM(p)

    p('v_and_b32 v5, 3, %s' % vr(vJ))
    p('v_lshlrev_b32 v5, 1, v5')
    p('v_add_u32 v5, v5, %s' % vr(vH))
    p('v_lshrrev_b32 v18, 2, %s' % vr(vJ))
    p('v_lshl_add_u32 v5, v5, 4, v18')
    p('v_lshlrev_b32 %s, 1, v5' % vr(vOutOff))
    p('v_lshlrev_b32 v19, 2, v1')
    p('v_mov_b32 v18, 0')
    tidx = []

    def tree_loads():
        p('s_lshl_b32 s4, s2, 8')
        cm.issue('buffer_load_dword %s, v19, %s, s4 offen' % (vr(TQ), sr(sQ, 4)))
        p('s_lshl_b32 s5, %s, 8' % sr(sG))
        cm.issue('buffer_load_dword %s, v19, %s, s5 offen' % (vr(TK), sr(sKT, 4)))
        p('s_lshr_b32 s4, %s, 2' % sr(sG))
        p('s_lshl_b32 s4, s4, 1')
        cm.issue('buffer_load_ushort %s, v18, %s, s4 offen' % (vr(TM), sr(sMK, 4)))
        cm.issue('buffer_load_ushort %s, %s, %s, s5 offen' % (vr(VT0), vr(vOutOff), sr(sVT, 4)))
        tidx.append(cm.issue('buffer_load_ushort %s, %s, %s, s5 offen offset:16' % (vr(VT1), vr(vOutOff), sr(sVT, 4))))

    def tree_score():
        p('v_lshlrev_b32 v5, 16, %s' % vr(TQ))
        p('v_and_b32 %s, 0xffff0000, %s' % (vr(TQ), vr(TQ)))
        p('v_lshlrev_b32 v6, 16, %s' % vr(TK))
        p('v_and_b32 %s, 0xffff0000, %s' % (vr(TK), vr(TK)))
        p('v_mul_f32 v5, v5, v6')
        p('v_fmac_f32 v5, %s, %s' % (vr(TQ), vr(TK)))
        p('v_add_f32_dpp v5, v5, v5 row_shr:1 row_mask:0xf bank_mask:0xf bound_ctrl:0')
        p('v_add_f32_dpp v5, v5, v5 row_shr:2 row_mask:0xf bank_mask:0xf bound_ctrl:0')
        p('v_add_f32_dpp v5, v5, v5 row_shr:4 row_mask:0xf bank_mask:0xf bound_ctrl:0')
        p('v_add_f32_dpp v5, v5, v5 row_shr:8 row_mask:0xf bank_mask:0xf bound_ctrl:0')
        p('v_add_f32_dpp v5, v5, v5 row_bcast:15 row_mask:0xa bank_mask:0xf')
        p('v_add_f32_dpp v5, v5, v5 row_bcast:31 row_mask:0xc bank_mask:0xf')
        p('v_lshlrev_b32 %s, 16, %s' % (vr(TM), vr(TM)))
        p('v_sub_f32 %s, 1.0, %s' % (vr(TM), vr(TM)))
        p('v_mul_f32 %s, 0x%08x, %s' % (vr(TM), f2u(-1.0e9 * math.log2(math.e)), vr(TM)))
        p('v_readlane_b32 s4, v5, 63')
        p('v_lshlrev_b32 %s, 16, %s' % (vr(VT0), vr(VT0)))
        p('v_lshlrev_b32 %s, 16, %s' % (vr(VT1), vr(VT1)))
        p('v_mov_b32 v5, s4')
        p('v_mul_f32 v5, %s, v5' % sr(sC))
        p('v_add_f32 %s, v5, %s' % (vr(vT), vr(TM)))

    p('s_mov_b32 %s, 0x%08x' % (sr(sC), f2u(C)))
    if opt.treepos == 'front':
        tree_loads()
    p('v_lshlrev_b32 v6, 4, %s' % vr(vJ))
    p('v_lshl_add_u32 %s, %s, 11, v6' % (vr(vIn), vr(vH)))
    p('v_lshl_add_u32 v6, %s, 2, v1' % vr(vH))
    p('v_and_b32 v6, 7, v6')
    p('v_lshlrev_b32 v6, 4, v6')
    p('v_add_u32 %s, %d, v6' % (vr(vSt), 4096 + (AOFF if opt.hand == 'dual' else 0)))
    vI, vNT = 8, 21
    if opt.hand == 'dual':
        for i in range(4):
            p('v_add_u32 %s, 0x%x, %s' % (vr(vI + i), AOFF, vr(vIn)))
    p('v_lshlrev_b32 v6, 3, %s' % vr(vJ))
    p('v_add_u32 %s, %d, v6' % (vr(vSa), LDS_STAT))
    p('v_lshlrev_b32 v6, 2, %s' % vr(vJ))
    p('v_add_u32 %s, %d, v6' % (vr(vFa), LDS_F))
    p('v_lshrrev_b32 v6, 2, %s' % vr(vJ))
    p('v_mul_u32_u24 v7, %d, v6' % INBOX)
    if dual:
        p('s_mul_i32 %s, %s, %d' % (sr(sB2), sr(sS), INBOX))
        p('s_lshl_b32 s4, %s, 17' % sr(sG))
        p('s_add_u32 %s, %s, s4' % (sr(sB2), sr(sB2)))
    else:
        p('s_mul_i32 %s, s2, %d' % (sr(sB2), INBOX))
    p('s_mov_b32 %s, 0' % sr(sHi))
    p('s_mov_b32 %s, -1' % sr(sHi + 1))
    ST = 36
    D = 40
    W = 28
    if dual and opt.ptouch >= 0:
        p('v_mov_b32 v6, %d' % (LDS_F + 128))
        p('s_mov_b32 %s, 0x40000' % sr(sCap))
        p('L_SPIN0:')
        p('ds_read_b32 %s, v6' % vr(W))
        p('s_waitcnt lgkmcnt(0)')
        p('v_cmp_eq_u32 vcc, -1, %s' % vr(W))
        p('s_cbranch_vccz L_GOT0')
        p('s_sleep %d' % opt.spinsleep)
        p('s_sub_u32 %s, %s, 1' % (sr(sCap), sr(sCap)))
        p('s_cbranch_scc0 L_SPIN0')
        p('L_GOT0:')
        cm.issue('buffer_load_dwordx4 %s, %s, %s, %s offen sc1' % (vr(ST, 4), vr(vSt), sr(sWS, 4), sr(sB2)))
        for i in range(4):
            cm.issue('buffer_load_dwordx4 %s, %s, %s, %s offen offset:%d sc1' % (vr(D + 4 * i, 4), vr(vI + i), sr(sWS, 4), sr(sB2), i * 512))
    stamp('cflag')
    p('s_mov_b32 %s, 0x40000' % sr(sCap))
    p('L_SPIN:')
    p('ds_read_b64 %s, %s' % (vr(W, 2), vr(vSa)))
    p('s_waitcnt lgkmcnt(0)')
    p('v_max_u32 v6, %s, %s' % (vr(W), vr(W + 1)))
    p('v_cmp_eq_u32 vcc, -1, v6')
    p('s_cbranch_vccz L_GOT')
    p('s_sleep %d' % opt.spinsleep)
    p('s_sub_u32 %s, %s, 1' % (sr(sCap), sr(sCap)))
    p('s_cbranch_scc0 L_SPIN')
    p('L_GOT:')
    stamp('cstat')
    Mg, fw = 32, 30
    p('s_add_u32 %s, %s, 1' % (sr(sT), sr(sE)))
    p('v_max_f32_dpp %s, %s, %s quad_perm:[1,0,3,2] row_mask:0xf bank_mask:0xf' % (vr(Mg), vr(W), vr(W)))
    p('v_mov_b32 %s, %s' % (vr(Mg + 2), sr(sT)))
    p('v_max_f32_dpp %s, %s, %s quad_perm:[2,3,0,1] row_mask:0xf bank_mask:0xf' % (vr(Mg), vr(Mg), vr(Mg)))
    if opt.hand == 'dual':
        p('v_not_b32 %s, %s' % (vr(vNT), vr(Mg + 2)))
        p('v_xor_b32 %s, s7, %s' % (vr(Mg + 3), vr(vNT)))
    else:
        p('v_not_b32 %s, %s' % (vr(Mg + 3), vr(Mg + 2)))
    p('v_sub_f32 %s, %s, %s' % (vr(fw), vr(W), vr(Mg)))
    p('v_exp_f32 %s, %s' % (vr(fw), vr(fw)))
    p('v_mul_f32 %s, %s, %s' % (vr(Mg + 1), vr(fw), vr(W + 1)))
    p('ds_write_b32 %s, %s' % (vr(vFa), vr(fw)))
    p('v_add_f32_dpp %s, %s, %s quad_perm:[1,0,3,2] row_mask:0xf bank_mask:0xf' % (vr(Mg + 1), vr(Mg + 1), vr(Mg + 1)))
    p('v_add_f32_dpp %s, %s, %s quad_perm:[2,3,0,1] row_mask:0xf bank_mask:0xf' % (vr(Mg + 1), vr(Mg + 1), vr(Mg + 1)))
    for k in range(4):
        p('s_bfe_u32 %s, %s, 0x%x' % (sr(sTb + k), sr(sT), (8 << 16) | (8 * k)))

    def statpub():
        if opt.hand == 'dual':
            p('s_add_u32 s6, %s, 0x%x' % (sr(sA), AOFF))
        p('s_mov_b64 exec, 0x11111111')
        if opt.hand == 'dual':
            cm.issue('buffer_store_dwordx4 %s, v7, %s, s6 offen%s' % (vr(Mg, 4), sr(sWS, 4), opt.aflag))
        cm.issue('buffer_store_dwordx4 %s, v7, %s, %s offen sc1' % (vr(Mg, 4), sr(sWS, 4), sr(sA)))
        p('s_mov_b64 exec, -1')

    sidx = []

    def statld():
        sidx[:] = [cm.issue('buffer_load_dwordx4 %s, %s, %s, %s offen sc1' % (vr(ST, 4), vr(vSt), sr(sWS, 4), sr(sB2)))]

    if opt.middelay:
        p('s_sleep %d' % opt.middelay)
    if opt.statpos == 'early':
        statpub()
    if opt.treepos == 'mid':
        tree_loads()
    if opt.touchout:
        p('s_lshl_b32 s4, s2, 8')
        cm.issue('buffer_load_dword v63, v19, %s, s4 offen' % sr(sOUT, 4))
    if opt.statld == 'mid':
        assert opt.statpos == 'early'
        statld()
    p('s_waitcnt lgkmcnt(0)')
    stamp('cpub')
    p('s_barrier')
    if opt.statpos != 'early':
        statpub()
    if opt.statld != 'mid':
        statld()
    stamp('bar2')

    def dloads(base=D):
        r = None
        for i in range(4):
            r = cm.issue('buffer_load_dwordx4 %s, %s, %s, %s offen offset:%d sc1' % (vr(base + 4 * i, 4), vr(vI + i if opt.hand == 'dual' else vIn), sr(sWS, 4), sr(sB2), i * 512))
        return r

    dloads()
    if opt.treepos == 'late':
        tree_loads()
    p('s_mov_b32 %s, 0x10000' % sr(sCap))
    if opt.treepos in ('front', 'mid'):
        cm.wait(tidx[0])
        tree_score()
    cm.wait(sidx[0])
    p('L_STAT:')
    p('v_xor_b32 v6, %s, %s' % (vr(ST + 2), vr(Mg + 2)))
    if opt.hand == 'dual':
        p('v_xor_b32 v4, %s, %s' % (vr(ST + 3), vr(vNT)))
        p('v_lshrrev_b32 v5, 4, v4')
    else:
        p('v_xor_b32 v5, %s, %s' % (vr(ST + 3), vr(Mg + 3)))
    p('v_or_b32 v6, v5, v6')
    p('v_cmp_ne_u32 vcc, 0, v6')
    p('s_cbranch_vccz L_STATOK')
    p('s_sub_u32 %s, %s, 1' % (sr(sCap), sr(sCap)))
    p('s_cbranch_scc1 L_STATOK')
    if opt.pollsleep:
        p('s_sleep %d' % opt.pollsleep)
    if opt.hand == 'dual':
        p('s_cmp_gt_u32 %s, 0x%x' % (sr(sCap), 0x10000 - 1 - opt.patience))
        p('s_cbranch_scc1 L_NOALT')
        p('v_xor_b32 %s, 0x%x, %s' % (vr(vSt), AOFF, vr(vSt)))
        p('L_NOALT:')
    p('buffer_load_dwordx4 %s, %s, %s, %s offen sc1' % (vr(ST, 4), vr(vSt), sr(sWS, 4), sr(sB2)))
    p('s_waitcnt vmcnt(0)')
    p('s_branch L_STAT')
    p('L_STATOK:')
    stamp('sready')
    if opt.hand == 'dual':
        p('v_cmp_eq_u32 vcc, s7, v4')
        p('v_mov_b32 v5, 0x%x' % AOFF)
        p('v_cndmask_b32 v4, 0, v5, vcc')
        for i in range(4):
            p('v_add_u32_dpp %s, v4, %s row_newbcast:%d row_mask:0xf bank_mask:0xf' % (vr(vI + i), vr(vIn), i))
    if opt.treepos == 'late':
        p('s_waitcnt vmcnt(0)')
        tree_score()
    Mx, f, ft, fl, rr = 56, 57, 58, 59, 60
    p('v_max_f32_dpp %s, %s, %s quad_perm:[1,0,3,2] row_mask:0xf bank_mask:0xf' % (vr(Mx), vr(ST), vr(ST)))
    p('v_max_f32_dpp %s, %s, %s quad_perm:[2,3,0,1] row_mask:0xf bank_mask:0xf' % (vr(Mx), vr(Mx), vr(Mx)))
    p('v_max_f32_dpp %s, %s, %s row_half_mirror row_mask:0xf bank_mask:0xf' % (vr(Mx), vr(Mx), vr(Mx)))
    p('v_max_f32 %s, %s, %s' % (vr(Mx), vr(Mx), vr(vT)))
    p('v_sub_f32 %s, %s, %s' % (vr(f), vr(ST), vr(Mx)))
    p('v_sub_f32 %s, %s, %s' % (vr(ft), vr(vT), vr(Mx)))
    p('v_exp_f32 %s, %s' % (vr(f), vr(f)))
    p('v_exp_f32 %s, %s' % (vr(ft), vr(ft)))
    p('v_mul_f32 %s, %s, %s' % (vr(fl), vr(f), vr(ST + 1)))
    p('v_add_f32_dpp %s, %s, %s quad_perm:[1,0,3,2] row_mask:0xf bank_mask:0xf' % (vr(fl), vr(fl), vr(fl)))
    p('v_add_f32_dpp %s, %s, %s quad_perm:[2,3,0,1] row_mask:0xf bank_mask:0xf' % (vr(fl), vr(fl), vr(fl)))
    p('v_add_f32_dpp %s, %s, %s row_half_mirror row_mask:0xf bank_mask:0xf' % (vr(fl), vr(fl), vr(fl)))
    p('v_add_f32 %s, %s, %s' % (vr(fl), vr(fl), vr(ft)))
    p('v_rcp_f32 %s, %s' % (vr(rr), vr(fl)))
    p('v_mul_f32 %s, %s, %s' % (vr(f), vr(f), vr(rr)))
    p('v_mul_f32 %s, %s, %s' % (vr(ft), vr(ft), vr(rr)))
    A = 64
    p('v_mul_f32 v5, %s, %s' % (vr(ft), vr(VT0)))
    p('v_mul_f32 v6, %s, %s' % (vr(ft), vr(VT1)))
    p('v_cndmask_b32 %s, v5, 0, %s' % (vr(A), sr(sHi, 2)))
    p('v_cndmask_b32 %s, v6, 0, %s' % (vr(A + 1), sr(sHi, 2)))
    p('v_cndmask_b32 %s, 0, v5, %s' % (vr(A + 2), sr(sHi, 2)))
    p('v_cndmask_b32 %s, 0, v6, %s' % (vr(A + 3), sr(sHi, 2)))
    p('s_mov_b32 %s, 0x10000' % sr(sCap))
    mx = 61

    def dcheck(base):
        for i in range(4):
            for k in range(4):
                p('v_xor_b32 %s, %s, %s' % (vr(base + 4 * i + k), sr(sTb + k), vr(base + 4 * i + k)))
            if i == 0:
                p('v_or3_b32 %s, %s, %s, %s' % (vr(mx), vr(base), vr(base + 1), vr(base + 2)))
                p('v_mov_b32 %s, %s' % (vr(mx + 1), vr(base + 3))) if False else None
            elif i == 1:
                p('v_or3_b32 %s, %s, %s, %s' % (vr(mx + 1), vr(base + 3), vr(base + 4), vr(base + 5)))
                p('v_or3_b32 %s, %s, %s, %s' % (vr(mx), vr(mx), vr(base + 6), vr(base + 7)))
            elif i == 2:
                p('v_or3_b32 %s, %s, %s, %s' % (vr(mx + 1), vr(mx + 1), vr(base + 8), vr(base + 9)))
                p('v_or3_b32 %s, %s, %s, %s' % (vr(mx), vr(mx), vr(base + 10), vr(base + 11)))
            else:
                p('v_or3_b32 %s, %s, %s, %s' % (vr(mx + 1), vr(mx + 1), vr(base + 12), vr(base + 13)))
                p('v_or3_b32 %s, %s, %s, %s' % (vr(mx), vr(mx), vr(base + 14), vr(base + 15)))
        p('v_or_b32 %s, %s, %s' % (vr(mx), vr(mx), vr(mx + 1)))
        p('v_and_b32 %s, 0xff, %s' % (vr(mx), vr(mx)))
        p('v_cmp_ne_u32 vcc, 0, %s' % vr(mx))

    def finish(base):
        stamp('dready')
        for i in range(4):
            for k in range(4):
                p('v_fmac_f32_dpp %s, %s, %s row_newbcast:%d row_mask:0xf bank_mask:0xf' % (vr(A + k), vr(f), vr(base + 4 * i + k), i))
        p('v_permlane32_swap_b32 %s, %s' % (vr(A), vr(A + 2)))
        p('v_permlane32_swap_b32 %s, %s' % (vr(A + 1), vr(A + 3)))
        p('v_add_f32 %s, %s, %s' % (vr(A), vr(A), vr(A + 2)))
        p('v_add_f32 %s, %s, %s' % (vr(A + 1), vr(A + 1), vr(A + 3)))
        p('v_cvt_pk_bf16_f32 %s, %s, %s' % (vr(A), vr(A), vr(A + 1)))
        p('s_lshl_b32 s4, s2, 8')
        osc = {0: '', 1: ' sc1', 2: ' sc0 sc1', 3: ' nt'}[opt.outsc]
        p('buffer_store_short %s, %s, %s, s4 offen%s' % (vr(A), vr(vOutOff), sr(sOUT, 4), osc))
        p('buffer_store_short_d16_hi %s, %s, %s, s4 offen offset:16%s' % (vr(A), vr(vOutOff), sr(sOUT, 4), osc))
        p('s_cmp_lg_u32 %s, 0' % sr(sS))
        p('s_cbranch_scc1 L_DONE')
        p('v_mov_b32 v5, %s' % sr(sOk))
        p('s_mov_b64 exec, 1')
        p('buffer_store_dword %s, v5, %s, 0 offen' % (vr(Mg + 2), sr(sWS, 4)))
        p('s_mov_b64 exec, -1')
        p('s_branch L_DONE') if False else None

    p('s_waitcnt vmcnt(0)')
    p('L_POLL:')
    dcheck(D)
    p('s_cbranch_vccz L_READY')
    p('s_sub_u32 %s, %s, 1' % (sr(sCap), sr(sCap)))
    p('s_cbranch_scc1 L_READY')
    if opt.hand == 'dual':
        p('s_cmp_lg_u32 %s, 0x%x' % (sr(sCap), 0x10000 - 1024))
        p('s_cbranch_scc1 L_NOSW')
        for i in range(4):
            p('v_mov_b32 %s, %s' % (vr(vI + i), vr(vIn)))
        p('L_NOSW:')
    if opt.pollsleep:
        p('s_sleep %d' % opt.pollsleep)
    dloads()
    p('s_waitcnt vmcnt(0)')
    p('s_branch L_POLL')
    p('L_READY:')
    finish(D)
    p('L_DONE:')
    if opt.diag:
        p('s_cmp_lg_u32 s2, %d' % opt.diagwg)
        p('s_cbranch_scc1 L_NODIAG')
        p('s_load_dwordx2 %s, s[0:1], 56' % sr(sDBG, 2))
        srd(sDBG, 256)
        p('s_waitcnt lgkmcnt(0) vmcnt(0)')
        p('v_mov_b32 v2, 0')
        p('v_mov_b32 v3, 0')
        p('s_mov_b64 exec, 1')

        def timed(srdr, off, dst):
            p('s_mov_b32 s4, 0x%x' % off)
            p('s_memtime s[44:45]')
            p('s_waitcnt lgkmcnt(0)')
            p('buffer_load_dword v8, v2, %s, s4 offen' % sr(srdr, 4))
            p('s_waitcnt vmcnt(0)')
            p('s_memtime s[46:47]')
            p('s_waitcnt lgkmcnt(0)')
            p('s_sub_u32 %s, s46, s44' % dst)
        for bi, srdr in enumerate((sK, sV, sWS)):
            p('s_mov_b32 s50, 0')
            for pg in range(16):
                base = (pg << 21) + (0x1000000 if srdr == sWS else 0)
                timed(srdr, base + 0x18000, 's48')
                timed(srdr, base + 0x10080, 's48')
                timed(srdr, base + 0x12080, 's49')
                if pg == 5:
                    p('s_mov_b32 s%d, s48' % (52 + 2 * bi))
                    p('s_mov_b32 s%d, s49' % (53 + 2 * bi))
                p('s_cmp_lt_u32 s48, s49')
                p('s_cselect_b32 s5, %d, 0' % (1 << pg))
                p('s_or_b32 s50, s50, s5')
            p('s_mov_b32 s%d, s50' % (58 + bi))
        p('s_getreg_b32 s7, hwreg(HW_REG_XCC_ID, 0, 4)')
        p('s_mov_b64 exec, -1')
        vals = [sK, sK + 1, sV, sV + 1, sWS, sWS + 1, 7, 58, 59, 60, 52, 53, 54, 55, 56, 57]
        for i, r in enumerate(vals):
            p('v_writelane_b32 v3, s%d, %d' % (r, i))
        p('v_lshlrev_b32 v2, 2, v1')
        p('s_mov_b64 exec, 0xffff')
        p('buffer_store_dword v3, v2, %s, 0 offen' % sr(sDBG, 4))
        p('s_mov_b64 exec, -1')
        p('L_NODIAG:')
    stamp('end')
    dump_stamps()
    p('L_END:')
    p('s_endpgm')
    body = p.text(verbose=opt.verbose)
    out = HEADER
    out += '; Override launch geometry by editing the next line (default: block=256,\n'
    out += '; grid=ceil(out_elems/256), lds=0). Harness parses it; keep it on one line.\n'
    out += '; @launch grid=(256,1,1) block=(320,1,1) lds=%d\n' % LDS_SIZE
    out += '.amdgcn_target "amdgcn-amd-amdhsa--gfx950"\n.text\n.globl %s_kernel\n.p2align 8\n.type %s_kernel,@function\n%s_kernel:\n' % (NAME, NAME, NAME)
    out += body
    out += '.section .rodata,"a"\n.p2align 6\n.amdhsa_kernel %s_kernel\n' % NAME
    out += '  .amdhsa_next_free_vgpr 232\n  .amdhsa_next_free_sgpr %d\n  .amdhsa_accum_offset 232\n' % (102 if opt.prof else 72)
    out += '  .amdhsa_group_segment_fixed_size 0\n  .amdhsa_kernarg_size 72\n  .amdhsa_user_sgpr_count 2\n'
    out += '  .amdhsa_user_sgpr_kernarg_segment_ptr 1\n  .amdhsa_system_sgpr_workgroup_id_x 1\n.end_amdhsa_kernel\n'
    return out


if __name__ == '__main__':
    ap = argparse.ArgumentParser()
    ap.add_argument('-o', default='v3.s')
    ap.add_argument('--bar0', type=int, default=2)
    ap.add_argument('--qpos', type=int, default=2)
    ap.add_argument('--vlead', type=int, default=2)
    ap.add_argument('--vstep', type=int, default=2)
    ap.add_argument('--spinsleep', type=int, default=2)
    ap.add_argument('--cprio', type=int, default=3)
    ap.add_argument('--pollsleep', type=int, default=0)
    ap.add_argument('--treepos', default='mid')
    ap.add_argument('--statpos', default='early')
    ap.add_argument('--statld', default='mid')
    ap.add_argument('--statafter', type=int, default=1)
    ap.add_argument('--touchout', type=int, default=0)
    ap.add_argument('--middelay', type=int, default=0)
    ap.add_argument('--outsc', type=int, default=0)
    ap.add_argument('--epos', type=int, default=0)
    ap.add_argument('--map', default='')
    ap.add_argument('--xrot', type=int, default=0)
    ap.add_argument('--phase', type=int, default=0)
    ap.add_argument('--diag', type=int, default=0)
    ap.add_argument('--diagwg', type=int, default=1)
    ap.add_argument('--vpar', default='same')
    ap.add_argument('--hand', default='sc1')
    ap.add_argument('--aflag', default='')
    ap.add_argument('--ptouch', type=int, default=5)
    ap.add_argument('--patience', type=int, default=32)
    ap.add_argument('--win', type=int, default=0)
    ap.add_argument('--gran', type=int, default=4)
    ap.add_argument('--tmap', default='w8')
    ap.add_argument('--rot', default='none')
    ap.add_argument('--verbose', action='store_true')
    ap.add_argument('--prof', action='store_true')
    opt = ap.parse_args()
    open(opt.o, 'w').write(gen(opt))
    print('wrote', opt.o)
```
